```python
import torch

def _softmax(x, axis=-1):
    return torch.softmax(x, dim=axis)
def _gelu(x):
    return torch.nn.functional.gelu(x, approximate="tanh")
def _silu(x):
    return torch.nn.functional.silu(x)
def _sigmoid(x):
    return torch.sigmoid(x)
def _layernorm(x, axis=-1, eps=1e-5):
    m = x.mean(dim=axis, keepdim=True)
    v = x.var(dim=axis, keepdim=True, unbiased=False)
    return (x - m) / torch.sqrt(v + eps)
def _scatter_add(tgt, idx, src, axis=0):
    return tgt.clone().index_add_(axis, idx, src)
def _segment_sum(src, seg, n):
    out = torch.zeros((n,) + src.shape[1:], dtype=src.dtype)
    return out.index_add_(0, seg, src)
def _pad(x, pw):
    flat = tuple(v for pair in reversed(pw) for v in pair)
    return torch.nn.functional.pad(x, flat)

kernel_name = 'sequential_preLN__sliding_block_cached__glu_gated_glu__decode'

def setup_inputs():

    _w = (lambda a: (lambda t: t.to(torch.bfloat16) if t.is_floating_point() else t)(torch.as_tensor(a)))
    def _A_setup():
        B, Sq, D = 4, 1, 512
        Hq, Hkv, Sk, Dh = 32, 8, 8192, 128
        assert Hq % Hkv == 0, (Hq, Hkv)
        return {
            "x": _w((lambda *s: torch.randn(*s, dtype=torch.bfloat16) * 0.05)(B, Sq, D)),
            "k_cache": _w((lambda *s: torch.randn(*s, dtype=torch.bfloat16) * 3.2)(B, Hkv, Sk, Dh)),
            "v_cache": _w((lambda *s: torch.randn(*s, dtype=torch.bfloat16) * 0.4)(B, Hkv, Sk, Dh)),
            "wq": _w((lambda *s: torch.randn(*s, dtype=torch.bfloat16) * 3.2)(D, Hq * Dh) * (D ** -0.5)),
            "wo": _w((lambda *s: torch.randn(*s, dtype=torch.bfloat16) * 0.4)(Hq * Dh, D) * ((Hq * Dh) ** -0.5)),
        }
    _A_in = _A_setup()

    def _B_setup():
        B, S, D, F = 4, 1, 512, 1792
        return {
            "x": _w((lambda *s: torch.randn(*s, dtype=torch.bfloat16) * 0.05)(B, S, D)),
            "w_gate": _w((lambda *s: torch.randn(*s, dtype=torch.bfloat16) * 0.1)(D, F)),
            "w_up": _w((lambda *s: torch.randn(*s, dtype=torch.bfloat16) * 0.05)(D, F)),
            "w_down": _w((lambda *s: torch.randn(*s, dtype=torch.bfloat16) * 0.05)(F, D)),
        }
    _B_in = _B_setup()

    return {
        "A_x": _A_in["x"],
        "A_k_cache": _A_in["k_cache"],
        "A_v_cache": _A_in["v_cache"],
        "A_wq": _A_in["wq"],
        "A_wo": _A_in["wo"],
        "B_x": _B_in["x"],
        "B_w_gate": _B_in["w_gate"],
        "B_w_up": _B_in["w_up"],
        "B_w_down": _B_in["w_down"],
    }

def reference(A_x, A_k_cache, A_v_cache, A_wq, A_wo, B_x, B_w_gate, B_w_up, B_w_down):
    def _A_ref(x, k_cache, v_cache, wq, wo):
        B, Sq, D = x.shape
        Hq, Dh = 32, 128
        Hkv, Sk = k_cache.shape[1], k_cache.shape[2]
        W = min(4096, max(256, Sk // 4))
        rep = Hq // Hkv
        q = (lambda x, *d: x.permute(*d))((x @ wq).reshape(B, Sq, Hq, Dh), 0, 2, 1, 3)
        k = (lambda x, n, axis: torch.repeat_interleave(x, n, dim=axis))(k_cache[:, :, Sk - W:, :], rep, axis=1)
        v = (lambda x, n, axis: torch.repeat_interleave(x, n, dim=axis))(v_cache[:, :, Sk - W:, :], rep, axis=1)
        scores = torch.einsum("bhqd,bhkd->bhqk", q, k) * (Dh ** -0.5)
        p = _softmax(scores, axis=-1)
        o = torch.einsum("bhqk,bhkd->bhqd", p, v)
        return (lambda x, *d: x.permute(*d))(o, 0, 2, 1, 3).reshape(B, Sq, Hq * Dh) @ wo

    def _B_ref(x, w_gate, w_up, w_down):
        g = torch.einsum("bsd,df->bsf", x, w_gate)
        u = torch.einsum("bsd,df->bsf", x, w_up)
        h = _sigmoid(g) * u
        return torch.einsum("bsf,fd->bsd", h, w_down)

    x = A_x
    h = x + _A_ref(_layernorm(x, axis=-1), A_k_cache, A_v_cache, A_wq, A_wo)
    h2 = h + _B_ref(_layernorm(h, axis=-1), B_w_gate, B_w_up, B_w_down)
    return h2
```

```python
NAME = "sequential_preLN__sliding_block_cached__glu_gated_glu__decode"

HEADER = """; Kernarg layout for this problem (96 bytes, ptrs only, base s[0:1]):
"""

class Asm:
    def __init__(self):
        self.lines = []
        self._lbl = 0
    def __call__(self, s):
        for l in s.strip("\n").split("\n"):
            self.lines.append("    " + l.strip())
    def label(self, l):
        self.lines.append(l + ":")
    def newlabel(self, p="L"):
        self._lbl += 1
        return f"{p}_{self._lbl}"
    def comment(self, s):
        self.lines.append("    ; " + s)
    def text(self):
        return "\n".join(self.lines) + "\n"

def kernel_file(kernels, launches):
    out = HEADER
    if len(launches) == 1 and launches[0][0] == NAME + "_kernel":
        _, g, b, lds = launches[0]
        out += f"; @launch grid=({g[0]},{g[1]},{g[2]}) block=({b[0]},{b[1]},{b[2]}) lds={lds}\n"
    else:
        for lab, g, b, lds in launches:
            out += f"; @launch kernel={lab} grid=({g[0]},{g[1]},{g[2]}) block=({b[0]},{b[1]},{b[2]}) lds={lds}\n"
    out += '.amdgcn_target "amdgcn-amd-amdhsa--gfx950"\n.text\n'
    for lab, body, nv, ns, acc in kernels:
        out += f".globl {lab}\n.p2align 8\n.type {lab},@function\n{lab}:\n"
        out += body.text()
        out += "    s_endpgm\n"
    out += '.section .rodata,"a"\n'
    for lab, body, nv, ns, acc in kernels:
        out += f""".p2align 6
.amdhsa_kernel {lab}
  .amdhsa_next_free_vgpr {nv}
  .amdhsa_next_free_sgpr {ns}
  .amdhsa_accum_offset {acc}
  .amdhsa_group_segment_fixed_size 0
  .amdhsa_kernarg_size 96
  .amdhsa_user_sgpr_count 2
  .amdhsa_user_sgpr_kernarg_segment_ptr 1
  .amdhsa_system_sgpr_workgroup_id_x 1
.end_amdhsa_kernel
"""
    return out
```

```python
import sys
from asmlib import *
import hz

WS_EPOCH = 0x0
WS_Q  = 0x10000
WS_O  = 0x20000
WS_SM = 0x60000
SM_ML, SM_H, SM_HH = 0x0, 0x400, 0x1400
WS_P2 = 0x80000
WS_P5 = 0xC0000
WS_ST = 0x100000
L_WQ, L_XN, L_XR, L_QRED, L_QL = 0x0, 0x4000, 0x5400, 0x6400, 0x6C00
XN_STRIDE = 1040
L_MX, L_LS, L_UF, L_HL = 0x7000, 0x7080, 0x7100, 0x7200
L_RED = 0x8000
L_GW = 0xC000
L_DW = 0xC000
LDS_BYTES = 0x1C000
POLL_MAX = 200000
LOG2E = 0x3fb8aa3b
SCALE = 0x3db504f3

class K(Asm):
    def __init__(self, stamps=False):
        super().__init__()
        self.stamps = stamps
    def stamp(self, idx):
        if not self.stamps: return
        self("s_memrealtime s[100:101]")
        self("s_waitcnt lgkmcnt(0)")
        self(f"v_writelane_b32 v255, s100, {idx}")

def dpp(op, d, s0, s1, ctrl):
    return f"{op}_dpp v{d}, v{s0}, v{s1} {ctrl} row_mask:0xf bank_mask:0xf"

def row16_allreduce(a, op, regs):
    for ctrl in ("quad_perm:[1,0,3,2]", "quad_perm:[2,3,0,1]", "row_half_mirror", "row_mirror"):
        for r in regs:
            a(dpp(op, r, r, r, ctrl))

def cross_rows_allreduce(a, op, regs, tmps):
    for sw in ("v_permlane16_swap_b32", "v_permlane32_swap_b32"):
        for r, t in zip(regs, tmps):
            a(f"v_mov_b32 v{t}, v{r}")
        for r, t in zip(regs, tmps):
            a(f"{sw} v{r}, v{t}")
        for r, t in zip(regs, tmps):
            a(f"{op} v{r}, v{r}, v{t}")

def round_bf16(a, r, t=None):
    a(f"v_cvt_pk_bf16_f32 v{r}, v{r}, v{r}")
    a(f"v_and_b32 v{r}, 0xffff0000, v{r}")

def layernorm_row(a, src, f, t, dst):
    for k in range(4):
        a(f"v_lshlrev_b32 v{f+2*k}, 16, v{src+k}")
        a(f"v_and_b32 v{f+2*k+1}, 0xffff0000, v{src+k}")
    a(f"v_add_f32 v{t}, v{f}, v{f+1}")
    a(f"v_add_f32 v{t+1}, v{f+2}, v{f+3}")
    a(f"v_add_f32 v{t+2}, v{f+4}, v{f+5}")
    a(f"v_add_f32 v{t+3}, v{f+6}, v{f+7}")
    a(f"v_add_f32 v{t}, v{t}, v{t+1}")
    a(f"v_add_f32 v{t+2}, v{t+2}, v{t+3}")
    a(f"v_add_f32 v{t}, v{t}, v{t+2}")
    row16_allreduce(a, "v_add_f32", [t])
    cross_rows_allreduce(a, "v_add_f32", [t], [t+1])
    a(f"v_mul_f32 v{t}, 0x3b000000, v{t}")
    a(f"v_sub_f32 v{t+2}, v{f}, v{t}")
    a(f"v_mul_f32 v{t+1}, v{t+2}, v{t+2}")
    for k in range(1, 8):
        a(f"v_sub_f32 v{t+2}, v{f+k}, v{t}")
        a(f"v_fmac_f32 v{t+1}, v{t+2}, v{t+2}")
    row16_allreduce(a, "v_add_f32", [t+1])
    cross_rows_allreduce(a, "v_add_f32", [t+1], [t+2])
    a(f"v_mul_f32 v{t+1}, 0x3b000000, v{t+1}")
    round_bf16(a, t)
    round_bf16(a, t+1)
    a(f"v_add_f32 v{t+1}, 0x3727c5ac, v{t+1}")
    round_bf16(a, t+1)
    a(f"v_sqrt_f32 v{t+1}, v{t+1}")
    round_bf16(a, t+1)
    a(f"v_rcp_f32 v{t+1}, v{t+1}")
    for k in range(8):
        a(f"v_sub_f32 v{f+k}, v{f+k}, v{t}")
    for k in range(4):
        a(f"v_cvt_pk_bf16_f32 v{dst+k}, v{f+2*k}, v{f+2*k+1}")
    for k in range(4):
        a(f"v_lshlrev_b32 v{f+2*k}, 16, v{dst+k}")
        a(f"v_and_b32 v{f+2*k+1}, 0xffff0000, v{dst+k}")
    for k in range(8):
        a(f"v_mul_f32 v{f+k}, v{f+k}, v{t+1}")
    for k in range(4):
        a(f"v_cvt_pk_bf16_f32 v{dst+k}, v{f+2*k}, v{f+2*k+1}")

def poll(a, loads, regs, tmp, name):
    lp = a.newlabel("L_poll_" + name); dn = a.newlabel("L_done_" + name)
    a(f"s_mov_b32 s3, {POLL_MAX}")
    a.label(lp)
    for l in loads: a(l)
    a("s_waitcnt vmcnt(0)")
    rs = list(regs)
    if len(rs) == 1:
        a(f"v_cmp_eq_u32 vcc, -1, v{rs[0]}")
    else:
        cur = None
        if len(rs) % 2 == 0:
            a(f"v_max_u32 v{tmp}, v{rs[0]}, v{rs[1]}"); rs = rs[2:]
        else:
            a(f"v_max3_u32 v{tmp}, v{rs[0]}, v{rs[1]}, v{rs[2]}"); rs = rs[3:]
        while rs:
            a(f"v_max3_u32 v{tmp}, v{tmp}, v{rs[0]}, v{rs[1]}"); rs = rs[2:]
        a(f"v_cmp_eq_u32 vcc, -1, v{tmp}")
    a(f"s_cbranch_vccz {dn}")
    a("s_sub_u32 s3, s3, 1")
    a(f"s_cbranch_scc0 {lp}")
    a.label(dn)

def store_local(a, instr):
    l1 = a.newlabel("L_wt"); l2 = a.newlabel("L_st")
    a("s_cmp_lg_u32 s35, 0")
    a(f"s_cbranch_scc1 {l1}")
    a(instr)
    a(f"s_branch {l2}")
    a.label(l1)
    a(instr + " sc1")
    a.label(l2)

def build(stamps=False, nt=True):
    a = K(stamps)
    NT = " nt" if nt else ""
    a("s_load_dwordx16 s[4:19], s[0:1], 0")
    a("s_load_dwordx8 s[20:27], s[0:1], 64")
    a("s_cmp_ge_u32 s2, 256")
    a("s_cbranch_scc1 L_end")
    if stamps:
        a("v_mov_b32 v255, -1")
        a("s_memrealtime s[100:101]")
    a("v_lshrrev_b32 v4, 6, v0")
    a("v_and_b32 v1, 63, v0")
    a("v_readfirstlane_b32 s32, v4")
    a("s_and_b32 s28, s2, 7")
    a("s_lshr_b32 s29, s2, 3")
    a("s_lshr_b32 s30, s29, 3")
    a("s_and_b32 s31, s29, 7")
    a("v_lshrrev_b32 v2, 4, v1")
    a("v_and_b32 v3, 15, v1")
    a("v_lshlrev_b32 v5, 4, v1")
    a("v_lshrrev_b32 v6, 1, v1")
    a("v_lshlrev_b32 v6, 13, v6")
    a("v_and_b32 v7, 1, v1")
    a("v_lshl_add_u32 v6, v7, 4, v6")
    a("v_add_u32 v7, 0x40000, v6")
    a("v_and_b32 v8, 3, v3")
    a("v_lshlrev_b32 v8, 10, v8")
    a("v_lshrrev_b32 v9, 2, v3")
    a("v_lshl_add_u32 v8, v9, 8, v8")
    a("v_lshl_add_u32 v8, v2, 4, v8")
    a("s_lshl_b32 s36, s30, 24")
    a("s_lshl_b32 s37, s28, 21")
    a("s_add_u32 s36, s36, s37")
    a("s_lshl_b32 s37, s31, 16")
    a("s_add_u32 s36, s36, s37")
    a("s_lshl_b32 s37, s32, 13")
    a("s_add_u32 s36, s36, s37")
    a(f"s_add_u32 s36, s36, {6144*256 + 4096}")
    a("s_lshl_b32 s37, s32, 19")
    a("s_lshl_b32 s38, s28, 10")
    a("s_add_u32 s37, s37, s38")
    a("s_lshl_b32 s38, s29, 5")
    a("s_add_u32 s37, s37, s38")
    a("s_lshl_b32 s38, s32, 11")
    a("v_mov_b32 v12, -1"); a("v_mov_b32 v13, -1"); a("v_mov_b32 v14, -1"); a("v_mov_b32 v15, -1")
    a("s_waitcnt lgkmcnt(0)")
    if stamps:
        a("v_writelane_b32 v255, s100, 0")
    a("s_load_dword s34, s[26:27], 0")
    a("s_add_u32 s10, s10, s37"); a("s_addc_u32 s11, s11, 0")
    a("s_add_u32 s6, s6, s36"); a("s_addc_u32 s7, s7, 0")
    a("s_add_u32 s8, s8, s36"); a("s_addc_u32 s9, s9, 0")
    a("s_cmp_ge_u32 s32, 4")
    a("s_cbranch_scc1 L_p_hi")
    a("s_lshl_b32 s39, s32, 10")
    a("v_add_u32 v10, s39, v5")
    a("global_load_dwordx4 v[16:19], v10, s[4:5]")
    a("s_branch L_p_wq")
    a.label("L_p_hi")
    a("s_cmp_eq_u32 s32, 7")
    a("s_cbranch_scc1 L_p_pf")
    a("s_cmp_eq_u32 s32, 6")
    a("s_cbranch_scc1 L_p_sm")
    a("s_cmp_eq_u32 s32, 5")
    a("s_cbranch_scc1 L_p_p2")
    a("s_lshl_b32 s39, s28, 15"); a("s_lshl_b32 s40, s29, 10"); a("s_add_u32 s39, s39, s40")
    a(f"s_add_u32 s39, s39, {WS_O}")
    a("v_add_u32 v10, s39, v5")
    a("global_store_dwordx4 v10, v[12:15], s[26:27] sc1")
    a("s_branch L_p_wq")
    a.label("L_p_p2")
    a("s_lshl_b32 s39, s29, 13"); a("s_lshl_b32 s40, s28, 9"); a("s_add_u32 s39, s39, s40")
    a(f"s_add_u32 s39, s39, {WS_P2}")
    a("v_and_b32 v10, 31, v1"); a("v_lshlrev_b32 v10, 4, v10")
    a("v_lshrrev_b32 v11, 5, v1"); a("v_lshl_add_u32 v10, v11, 12, v10")
    a("v_add_u32 v10, s39, v10")
    a("global_store_dwordx4 v10, v[12:15], s[26:27] sc1")
    a("s_branch L_p_wq")
    a.label("L_p_sm")
    a("s_lshl_b32 s39, s28, 13"); a("s_lshl_b32 s40, s29, 8"); a("s_add_u32 s39, s39, s40")
    a(f"s_add_u32 s39, s39, {WS_SM}")
    a("s_lshr_b32 s40, s29, 1"); a("s_lshl_b32 s40, s40, 12")
    a("s_lshl_b32 s41, s28, 9"); a("s_add_u32 s40, s40, s41")
    a("s_and_b32 s41, s29, 1"); a("s_lshl_b32 s41, s41, 8"); a("s_add_u32 s40, s40, s41")
    a(f"s_add_u32 s40, s40, {WS_P5}")
    a("v_and_b32 v11, 16, v1")
    a("v_cmp_eq_u32 vcc, 0, v11")
    a("v_mov_b32 v10, s39"); a("v_mov_b32 v11, s40")
    a("v_cndmask_b32 v10, v11, v10, vcc")
    a("v_lshl_add_u32 v10, v3, 4, v10")
    a("global_store_dwordx4 v10, v[12:15], s[26:27] sc1")
    a("s_branch L_p_wq")
    a.label("L_p_pf")
    a("s_getpc_b64 s[14:15]")
    a("s_and_b32 s39, s29, CODE_KB_MASK"); a("s_lshl_b32 s39, s39, 10")
    a("v_add_u32 v10, s39, v5")
    a("global_load_dwordx4 v[16:19], v10, s[14:15]")
    a.label("L_p_wq")
    a(f"s_add_u32 m0, s38, {L_WQ}")
    a(f"global_load_lds_dwordx4 v6, s[10:11]{NT}")
    a(f"s_add_u32 m0, s38, {L_WQ + 1024}")
    a(f"global_load_lds_dwordx4 v7, s[10:11]{NT}")
    a("s_barrier")
    for tau in range(2):
        for t in range(4):
            r = 32 + 16 * tau + 4 * t
            a(f"global_load_dwordx4 v[{r}:{r+3}], v8, s[6:7] offset:{-4096 + 4096*tau + 64*t}{NT}")
    for j in range(8):
        r = 64 + 4 * j
        a(f"global_load_dwordx4 v[{r}:{r+3}], v5, s[8:9] offset:{-4096 + 1024*j}{NT}")
    a.stamp(1)
    a("s_getreg_b32 s35, hwreg(HW_REG_XCC_ID, 0, 4)")
    a("s_waitcnt lgkmcnt(0)")
    a("s_mul_i32 s33, s34, 0x9e3779b1")
    a("s_add_u32 s33, s33, 0x7f4a7c15")
    a("s_and_b32 s33, s33, 0xfffffff0")
    a("s_or_b32 s33, s33, s35")
    a("s_cmp_ge_u32 s32, 4")
    a("s_cbranch_scc1 L_ln1_done")
    a("s_waitcnt vmcnt(18)")
    a(f"s_lshl_b32 s39, s32, 10")
    a(f"v_add_u32 v10, s39, v5")
    a(f"ds_write_b128 v10, v[16:19] offset:{L_XR}")
    layernorm_row(a, 16, 20, 28, 12)
    a(f"s_mul_i32 s39, s32, {XN_STRIDE}")
    a(f"v_add_u32 v10, s39, v5")
    a(f"ds_write_b128 v10, v[12:15] offset:{L_XN}")
    a.label("L_ln1_done")
    a("v_and_b32 v9, 3, v3")
    a(f"v_mul_u32_u24 v10, {XN_STRIDE}, v9")
    a("v_lshl_add_u32 v10, v2, 4, v10")
    a("s_lshl_b32 s39, s32, 7")
    a("v_add_u32 v11, s39, v10")
    a("v_lshlrev_b32 v20, 8, v2")
    a("v_lshl_add_u32 v20, v3, 3, v20")
    a("v_add_u32 v20, s38, v20")
    a("s_waitcnt vmcnt(16) lgkmcnt(0)")
    a("s_barrier")
    a.stamp(2)
    a(f"ds_read_b128 v[12:15], v11 offset:{L_XN}")
    a(f"ds_read_b128 v[16:19], v11 offset:{L_XN + 64}")
    a(f"ds_read_b64_tr_b16 v[24:25], v20 offset:{L_WQ}")
    a(f"ds_read_b64_tr_b16 v[26:27], v20 offset:{L_WQ + 128}")
    a(f"ds_read_b64_tr_b16 v[28:29], v20 offset:{L_WQ + 1024}")
    a(f"ds_read_b64_tr_b16 v[30:31], v20 offset:{L_WQ + 1024 + 128}")
    a("s_lshl_b32 s39, s32, 8")
    a("v_lshlrev_b32 v21, 4, v3")
    a("v_add_u32 v21, s39, v21")
    a("s_waitcnt lgkmcnt(0)")
    a("v_mfma_f32_16x16x32_bf16 v[176:179], v[12:15], v[24:27], 0")
    a("v_mfma_f32_16x16x32_bf16 v[176:179], v[16:19], v[28:31], v[176:179]")
    a(f"ds_write_b128 v21, v[176:179] offset:{L_QRED}")
    a("s_waitcnt lgkmcnt(0)")
    a("s_barrier")
    a("s_cmp_ge_u32 s32, 4")
    a("s_cbranch_scc1 L_qpub_done")
    a("s_lshl_b32 s39, s32, 2")
    a("v_lshlrev_b32 v21, 4, v3")
    a("v_add_u32 v21, s39, v21")
    for k in range(8):
        a(f"ds_read_b32 v{12+k}, v21 offset:{L_QRED + 256*k}")
    a("s_lshl_b32 s39, s28, 13"); a("s_lshl_b32 s40, s32, 11"); a("s_add_u32 s39, s39, s40")
    a("s_lshl_b32 s40, s29, 6"); a("s_add_u32 s39, s39, s40")
    a(f"s_add_u32 s39, s39, {WS_Q}")
    a("s_add_u32 s14, s26, s39"); a("s_addc_u32 s15, s27, 0")
    a("s_waitcnt lgkmcnt(0)")
    a("v_add_f32 v12, v12, v13"); a("v_add_f32 v14, v14, v15"); a("v_add_f32 v16, v16, v17"); a("v_add_f32 v18, v18, v19")
    a("v_add_f32 v12, v12, v14"); a("v_add_f32 v16, v16, v18"); a("v_add_f32 v12, v12, v16")
    a("v_mov_b32_dpp v13, v12 quad_perm:[1,1,3,3] row_mask:0xf bank_mask:0xf")
    a("v_cvt_pk_bf16_f32 v12, v12, v13")
    for k in range(8):
        a(f"v_readlane_b32 s{40+2*k}, v12, {2*k}")
        a(f"s_mov_b32 s{41+2*k}, s33")
    for k in range(8):
        a(f"s_atomic_swap_x2 s[{40+2*k}:{41+2*k}], s[14:15], {8*k}")
    a("s_waitcnt lgkmcnt(0)")
    a.label("L_qpub_done")
    a.stamp(3)
    a("s_cmp_ge_u32 s29, 16")
    a("s_cbranch_scc1 L_nowo")
    a("s_lshr_b32 s39, s29, 2"); a("s_lshl_b32 s39, s39, 7")
    a("s_lshl_b32 s40, s28, 9"); a("s_add_u32 s39, s39, s40")
    a("s_and_b32 s40, s32, 2"); a("s_lshl_b32 s40, s40, 5"); a("s_add_u32 s39, s39, s40")
    a("s_and_b32 s40, s32, 4"); a("s_add_u32 s39, s39, s40")
    a("s_lshl_b32 s39, s39, 10")
    a("s_and_b32 s40, s29, 3"); a("s_lshl_b32 s40, s40, 8"); a("s_add_u32 s39, s39, s40")
    a("s_and_b32 s40, s32, 1"); a("s_lshl_b32 s40, s40, 7"); a("s_add_u32 s39, s39, s40")
    a("s_add_u32 s12, s12, s39"); a("s_addc_u32 s13, s13, 0")
    a("v_lshrrev_b32 v12, 1, v2"); a("v_lshlrev_b32 v12, 15, v12")
    a("v_and_b32 v13, 1, v2"); a("v_lshl_add_u32 v12, v13, 11, v12")
    a("v_lshl_add_u32 v12, v3, 3, v12")
    for j in range(8):
        rowoff = (8 * (j & 3) + (j >> 2)) * 1024
        if j & 3:
            a(f"v_add_u32 v13, {8192*(j&3)}, v12")
            a(f"global_load_dwordx2 v[{128+2*j}:{129+2*j}], v13, s[12:13] offset:{(j>>2)*1024}{NT}")
        else:
            a(f"global_load_dwordx2 v[{128+2*j}:{129+2*j}], v12, s[12:13] offset:{(j>>2)*1024}{NT}")
    a("s_branch L_wo_done")
    a.label("L_nowo")
    for j in range(8):
        a(f"global_load_dwordx2 v[{128+2*j}:{129+2*j}], v5, s[4:5]")
    a.label("L_wo_done")
    a("s_lshl_b32 s39, s28, 13"); a("s_lshl_b32 s40, s30, 11"); a("s_add_u32 s39, s39, s40")
    a("s_lshl_b32 s40, s32, 8"); a("s_add_u32 s39, s39, s40")
    a(f"s_add_u32 s39, s39, {WS_Q}")
    a("s_add_u32 s14, s26, s39"); a("s_addc_u32 s15, s27, 0")
    a(f"s_mov_b32 s3, {POLL_MAX}")
    a.label("L_qpoll")
    for k in range(4):
        a(f"s_load_dwordx16 s[{36+16*k}:{51+16*k}], s[14:15], {64*k} glc")
    a("s_waitcnt lgkmcnt(0)")
    a("s_xor_b32 s35, s37, s33")
    for k in range(1, 32):
        a(f"s_xor_b32 s{37+2*k}, s{37+2*k}, s33")
        a(f"s_or_b32 s35, s35, s{37+2*k}")
    a("s_cmp_lt_u32 s35, 16")
    a("s_cbranch_scc1 L_qok")
    a("s_sleep 4")
    a("s_sub_u32 s3, s3, 1")
    a("s_cbranch_scc0 L_qpoll")
    a.label("L_qok")
    for k in range(32):
        a(f"v_writelane_b32 v12, s{36+2*k}, {k}")
    a("v_writelane_b32 v12, s35, 32")
    a("s_lshl_b32 s39, s32, 7")
    a("v_lshl_add_u32 v13, v1, 2, s39")
    a(f"v_add_u32 v13, {L_QL}, v13")
    a("s_lshl_b32 s39, s32, 2")
    a(f"s_add_u32 s39, s39, {L_UF}")
    a("v_writelane_b32 v13, s39, 32")
    a("s_mov_b32 exec_hi, 1")
    a("ds_write_b32 v13, v12")
    a("s_mov_b32 exec_hi, -1")
    a("v_lshlrev_b32 v14, 8, v9")
    a("v_lshl_add_u32 v14, v2, 4, v14")
    a("v_and_b32 v15, 7, v1"); a("v_lshlrev_b32 v15, 2, v15")
    a("s_waitcnt lgkmcnt(0)")
    a("s_barrier")
    a.stamp(4)
    for t in range(4):
        a(f"ds_read_b128 v[{160+4*t}:{163+4*t}], v14 offset:{L_QL + 64*t}")
    a(f"ds_read_b32 v16, v15 offset:{L_UF}")
    a("s_waitcnt lgkmcnt(0)")
    a("v_cmp_ne_u32 vcc, 0, v16")
    a("s_or_b32 s35, vcc_lo, vcc_hi")
    a("s_or_b32 s39, s29, s32")
    a("s_cmp_lg_u32 s39, 0")
    a("s_cbranch_scc1 L_nocert")
    a("s_mov_b32 s39, 1")
    a("s_atomic_add s39, s[24:25], 0")
    a.label("L_nocert")
    a("s_waitcnt vmcnt(16)")
    a.stamp(5)
    for tau in range(2):
        for t in range(4):
            r = 32 + 16 * tau + 4 * t
            c = "0" if t == 0 else f"v[{176+4*tau}:{179+4*tau}]"
            a(f"v_mfma_f32_16x16x32_bf16 v[{176+4*tau}:{179+4*tau}], v[{r}:{r+3}], v[{160+4*t}:{163+4*t}], {c}")
    a(f"s_mov_b32 s39, {SCALE}")
    for k in range(4):
        a(f"v_cvt_pk_bf16_f32 v{12+k}, v{176+2*k}, v{177+2*k}")
    for k in range(4):
        a(f"v_lshlrev_b32 v{176+2*k}, 16, v{12+k}")
        a(f"v_and_b32 v{177+2*k}, 0xffff0000, v{12+k}")
    for k in range(8):
        a(f"v_mul_f32 v{176+k}, s39, v{176+k}")
    for k in range(4):
        a(f"v_cvt_pk_bf16_f32 v{12+k}, v{176+2*k}, v{177+2*k}")
    for k in range(4):
        a(f"v_lshlrev_b32 v{176+2*k}, 16, v{12+k}")
        a(f"v_and_b32 v{177+2*k}, 0xffff0000, v{12+k}")
    a("v_max3_f32 v12, v176, v177, v178")
    a("v_max3_f32 v13, v179, v180, v181")
    a("v_max3_f32 v12, v12, v182, v183")
    a("v_max_f32 v12, v12, v13")
    cross_rows_allreduce(a, "v_max_f32", [12], [13])
    a("s_lshl_b32 s40, s32, 4")
    a("v_lshl_add_u32 v17, v9, 2, s40")
    a(f"ds_write_b32 v17, v12 offset:{L_MX}")
    a("v_lshlrev_b32 v18, 2, v9")
    a("s_waitcnt lgkmcnt(0)")
    a("s_barrier")
    for k in range(8):
        a(f"ds_read_b32 v{20+k}, v18 offset:{L_MX + 16*k}")
    a(f"s_mov_b32 s39, {LOG2E}")
    a("s_waitcnt lgkmcnt(0)")
    a("v_max3_f32 v12, v20, v21, v22")
    a("v_max3_f32 v13, v23, v24, v25")
    a("v_max3_f32 v12, v12, v26, v27")
    a("v_max_f32 v19, v12, v13")
    for k in range(8):
        a(f"v_sub_f32 v{176+k}, v{176+k}, v19")
    for k in range(8):
        a(f"v_mul_f32 v{176+k}, s39, v{176+k}")
    for k in range(8):
        a(f"v_exp_f32 v{176+k}, v{176+k}")
    a("v_add_f32 v12, v176, v177"); a("v_add_f32 v13, v178, v179"); a("v_add_f32 v14, v180, v181"); a("v_add_f32 v15, v182, v183")
    a("v_add_f32 v12, v12, v13"); a("v_add_f32 v14, v14, v15"); a("v_add_f32 v12, v12, v14")
    cross_rows_allreduce(a, "v_add_f32", [12], [13])
    a(f"ds_write_b32 v17, v12 offset:{L_LS}")
    for k in range(4):
        a(f"v_cvt_pk_bf16_f32 v{20+k}, v{176+2*k}, v{177+2*k}")
    a("v_lshrrev_b32 v13, 2, v3")
    for cg in range(4):
        a(f"v_cmp_eq_u32 vcc, {cg}, v13")
        for k in range(4):
            a(f"v_cndmask_b32 v{184+4*cg+k}, 0, v{20+k}, vcc")
    a("s_mov_b32 s39, 0x05040100")
    a("s_mov_b32 s40, 0x07060302")
    a.stamp(6)
    a("s_cmp_ge_u32 s29, 16")
    a("s_cbranch_scc1 L_cert_ok")
    a(f"s_mov_b32 s3, {POLL_MAX}")
    a.label("L_certpoll")
    a("s_load_dword s41, s[24:25], 0 glc")
    a("s_waitcnt lgkmcnt(0)")
    a("s_cmp_ge_u32 s41, 8")
    a("s_cbranch_scc1 L_cert_ok")
    a("s_sleep 8")
    a("s_sub_u32 s3, s3, 1")
    a("s_cbranch_scc0 L_certpoll")
    a.label("L_cert_ok")
    a.stamp(7)
    for p in range(4):
        a(f"s_waitcnt vmcnt({8 + 6 - 2*p})")
        for e in range(8):
            sel = "s40" if e & 1 else "s39"
            a(f"v_perm_b32 v{96+4*e+p}, v{64+4*(2*p+1)+(e>>1)}, v{64+4*(2*p)+(e>>1)}, {sel}")
    a.stamp(8)
    for cg in range(4):
        for ac in range(2):
            e = 4 * ac + cg
            c = "0" if cg == 0 else f"v[{200+4*ac}:{203+4*ac}]"
            a(f"v_mfma_f32_16x16x32_bf16 v[{200+4*ac}:{203+4*ac}], v[{96+4*e}:{99+4*e}], v[{184+4*cg}:{187+4*cg}], {c}")
    a("s_lshl_b32 s41, s32, 11")
    a("v_add_u32 v12, s41, v5")
    a(f"ds_write_b128 v12, v[200:203] offset:{L_RED}")
    a(f"ds_write_b128 v12, v[204:207] offset:{L_RED + 1024}")
    a("s_waitcnt lgkmcnt(0)")
    a("s_barrier")
    a("s_cmp_ge_u32 s32, 3")
    a("s_cbranch_scc1 L_opub_done")
    a("s_cmp_eq_u32 s32, 2")
    a("s_cbranch_scc1 L_mlpub")
    a("s_lshl_b32 s41, s32, 10")
    a("v_add_u32 v12, s41, v5")
    for k in range(8):
        a(f"ds_read_b128 v[{32+4*k}:{35+4*k}], v12 offset:{L_RED + 2048*k}")
    a("s_lshl_b32 s41, s28, 15"); a("s_lshl_b32 s42, s29, 8"); a("s_add_u32 s41, s41, s42")
    a("s_lshl_b32 s42, s32, 7"); a("s_add_u32 s41, s41, s42")
    a(f"s_add_u32 s41, s41, {WS_O}")
    a("v_lshlrev_b32 v14, 13, v9")
    a("v_lshl_add_u32 v14, v2, 5, v14")
    a("v_lshl_add_u32 v14, v13, 3, v14")
    a("v_add_u32 v14, s41, v14")
    for k in range(0, 8, 2):
        a(f"s_waitcnt lgkmcnt({6-k})")
        a(f"v_pk_add_f32 v[{32+4*k}:{33+4*k}], v[{32+4*k}:{33+4*k}], v[{36+4*k}:{37+4*k}]")
        a(f"v_pk_add_f32 v[{34+4*k}:{35+4*k}], v[{34+4*k}:{35+4*k}], v[{38+4*k}:{39+4*k}]")
    for (d, s_) in ((32, 40), (48, 56), (32, 48)):
        a(f"v_pk_add_f32 v[{d}:{d+1}], v[{d}:{d+1}], v[{s_}:{s_+1}]")
        a(f"v_pk_add_f32 v[{d+2}:{d+3}], v[{d+2}:{d+3}], v[{s_+2}:{s_+3}]")
    a("v_cvt_pk_bf16_f32 v20, v32, v33")
    a("v_cvt_pk_bf16_f32 v21, v34, v35")
    a("v_min_u32 v20, -2, v20"); a("v_min_u32 v21, -2, v21")
    store_local(a, "global_store_dwordx2 v14, v[20:21], s[26:27]")
    a("s_branch L_opub_done")
    a.label("L_mlpub")
    for k in range(8):
        a(f"ds_read_b32 v{20+k}, v18 offset:{L_LS + 16*k}")
    a("s_lshl_b32 s41, s28, 13"); a("s_lshl_b32 s42, s29, 3"); a("s_add_u32 s41, s41, s42")
    a(f"s_add_u32 s41, s41, {WS_SM + SM_ML}")
    a("v_lshl_add_u32 v14, v9, 8, s41")
    a("s_waitcnt lgkmcnt(0)")
    a("v_add_f32 v20, v20, v21"); a("v_add_f32 v22, v22, v23"); a("v_add_f32 v24, v24, v25"); a("v_add_f32 v26, v26, v27")
    a("v_add_f32 v20, v20, v22"); a("v_add_f32 v24, v24, v26"); a("v_add_f32 v21, v20, v24")
    a("v_min_u32 v20, -2, v19"); a("v_min_u32 v21, -2, v21")
    a("s_mov_b64 exec, 15")
    store_local(a, "global_store_dwordx2 v14, v[20:21], s[26:27]")
    a("s_mov_b64 exec, -1")
    a.label("L_opub_done")
    a.stamp(9)
    a("s_cmp_ge_u32 s29, 16")
    a("s_cbranch_scc1 L_not_o")
    a("s_lshl_b32 s41, s28, 15"); a("s_lshr_b32 s42, s29, 2"); a("s_lshl_b32 s43, s42, 13"); a("s_add_u32 s41, s41, s43")
    a("s_lshr_b32 s43, s32, 1"); a("s_lshl_b32 s43, s43, 6"); a("s_add_u32 s41, s41, s43")
    a(f"s_add_u32 s41, s41, {WS_O}")
    a("v_lshlrev_b32 v14, 11, v13")
    a("v_lshl_add_u32 v14, v9, 8, v14")
    a("v_lshl_add_u32 v14, v2, 4, v14")
    a("v_add_u32 v14, s41, v14")
    a("s_lshl_b32 s41, s28, 13"); a("s_lshl_b32 s43, s42, 8"); a("s_add_u32 s41, s41, s43")
    a(f"s_add_u32 s41, s41, {WS_SM + SM_ML}")
    a("v_and_b32 v15, 7, v3"); a("v_lshlrev_b32 v15, 3, v15")
    a("v_lshl_add_u32 v15, v2, 6, v15")
    a("v_add_u32 v15, s41, v15")
    a("s_waitcnt vmcnt(0)")
    for p in range(4):
        for e in range(4):
            sel = "s40" if e & 1 else "s39"
            a(f"v_perm_b32 v{144+4*e+p}, v{128+2*(2*p+1)+(e>>1)}, v{128+2*(2*p)+(e>>1)}, {sel}")
    a.stamp(10)
    poll(a, ["global_load_dwordx2 v[20:21], v15, s[26:27] sc1",
             "global_load_dwordx4 v[32:35], v14, s[26:27] sc1",
             "global_load_dwordx4 v[36:39], v14, s[26:27] offset:1024 sc1"],
         [20, 21, 32, 33, 34, 35, 36, 37, 38, 39], 12, "h1")
    a.stamp(11)
    for sh in range(2):
        for e in range(4):
            d = 64 + 16 * sh + 4 * e
            a(f"v_mfma_f32_16x16x32_bf16 v[{d}:{d+3}], v[{32+4*sh}:{35+4*sh}], v[{144+4*e}:{147+4*e}], 0")
    a(f"s_mov_b32 s41, {LOG2E}")
    a("v_mov_b32 v22, v20")
    for ctrl in ("quad_perm:[1,0,3,2]", "quad_perm:[2,3,0,1]", "row_half_mirror"):
        a(dpp("v_max_f32", 22, 22, 22, ctrl))
    a("v_sub_f32 v20, v20, v22")
    a("v_mul_f32 v20, s41, v20")
    a("v_exp_f32 v20, v20")
    a("v_mul_f32 v21, v21, v20")
    for ctrl in ("quad_perm:[1,0,3,2]", "quad_perm:[2,3,0,1]", "row_half_mirror"):
        a(dpp("v_add_f32", 21, 21, 21, ctrl))
    a("v_rcp_f32 v21, v21")
    a("v_mul_f32 v20, v20, v21")
    for s_ in range(8):
        a(f"v_mov_b32_dpp v{24+s_}, v20 row_newbcast:{s_} row_mask:0xf bank_mask:0xf")
    for e in range(4):
        d0 = 64 + 4 * e; d1 = 80 + 4 * e
        a(f"v_pk_mul_f32 v[{40+2*e}:{41+2*e}], v[{d0}:{d0+1}], v[24:25]")
        a(f"v_pk_fma_f32 v[{40+2*e}:{41+2*e}], v[{d0+2}:{d0+3}], v[26:27], v[{40+2*e}:{41+2*e}]")
        a(f"v_pk_fma_f32 v[{40+2*e}:{41+2*e}], v[{d1}:{d1+1}], v[28:29], v[{40+2*e}:{41+2*e}]")
        a(f"v_pk_fma_f32 v[{40+2*e}:{41+2*e}], v[{d1+2}:{d1+3}], v[30:31], v[{40+2*e}:{41+2*e}]")
    for e in range(4):
        a(f"v_add_f32 v{48+e}, v{40+2*e}, v{41+2*e}")
    a("s_lshl_b32 s41, s32, 10")
    a("v_add_u32 v12, s41, v5")
    a(f"ds_write_b128 v12, v[48:51] offset:{L_WQ}")
    a("s_waitcnt lgkmcnt(0)")
    a("s_barrier")
    a("s_cmp_ge_u32 s32, 2")
    a("s_cbranch_scc1 L_p2_done")
    for k in range(4):
        a(f"ds_read_b128 v[{32+4*k}:{35+4*k}], v12 offset:{L_WQ + 2048*k}")
    a("s_and_b32 s41, s29, 3"); a("s_lshl_b32 s41, s41, 16"); a("s_lshl_b32 s43, s32, 15"); a("s_add_u32 s41, s41, s43")
    a("s_lshl_b32 s43, s28, 9"); a("s_add_u32 s41, s41, s43"); a("s_lshl_b32 s43, s42, 7"); a("s_add_u32 s41, s41, s43")
    a(f"s_add_u32 s41, s41, {WS_P2}")
    a("v_lshrrev_b32 v14, 3, v3"); a("v_lshlrev_b32 v14, 14, v14")
    a("v_lshl_add_u32 v14, v2, 12, v14")
    a("v_and_b32 v15, 7, v3"); a("v_lshl_add_u32 v14, v15, 4, v14")
    a("v_add_u32 v14, s41, v14")
    a("s_waitcnt lgkmcnt(0)")
    for (d, s_) in ((32, 36), (40, 44), (32, 40)):
        a(f"v_pk_add_f32 v[{d}:{d+1}], v[{d}:{d+1}], v[{s_}:{s_+1}]")
        a(f"v_pk_add_f32 v[{d+2}:{d+3}], v[{d+2}:{d+3}], v[{s_+2}:{s_+3}]")
    for k in range(4):
        a(f"v_min_u32 v{32+k}, -2, v{32+k}")
    a("global_store_dwordx4 v14, v[32:35], s[26:27] sc1")
    a.label("L_p2_done")
    a.stamp(12)
    a("s_cmp_eq_u32 s32, 7")
    a("s_cbranch_scc1 L_dw_done")
    a("s_mul_i32 s41, s28, 224"); a("s_lshl_b32 s43, s32, 5"); a("s_add_u32 s41, s41, s43"); a("s_lshl_b32 s41, s41, 10")
    a("s_lshl_b32 s43, s29, 6"); a("s_add_u32 s41, s41, s43")
    a("s_add_u32 s20, s20, s41"); a("s_addc_u32 s21, s21, 0")
    a("v_lshrrev_b32 v14, 2, v1"); a("v_lshlrev_b32 v14, 10, v14")
    a("v_and_b32 v15, 3, v1"); a("v_lshl_add_u32 v14, v15, 4, v14")
    a("v_add_u32 v15, 0x4000, v14")
    a("s_lshl_b32 s41, s32, 11")
    a(f"s_add_u32 m0, s41, {L_DW}")
    a(f"global_load_lds_dwordx4 v14, s[20:21]{NT}")
    a(f"s_add_u32 m0, s41, {L_DW + 1024}")
    a(f"global_load_lds_dwordx4 v15, s[20:21]{NT}")
    a.label("L_dw_done")
    a("s_cmp_ge_u32 s32, 4")
    a("s_cbranch_scc1 L_h2_done")
    a("s_lshl_b32 s41, s29, 14"); a("s_lshl_b32 s43, s32, 12"); a("s_add_u32 s41, s41, s43")
    a(f"s_add_u32 s41, s41, {WS_P2}")
    a("v_add_u32 v14, s41, v5")
    a("s_lshl_b32 s41, s32, 10"); a("s_lshl_b32 s43, s29, 6"); a("s_add_u32 s41, s41, s43")
    a("v_and_b32 v15, 7, v1")
    a("v_lshl_add_u32 v16, v15, 3, s41")
    a(f"ds_read_b64 v[22:23], v16 offset:{L_XR}")
    a("s_lshl_b32 s43, s28, 13"); a(f"s_add_u32 s43, s43, {WS_SM + SM_H}")
    a("v_add_u32 v16, s43, v16")
    a("s_lshl_b32 s43, s32, 2")
    a("v_lshl_add_u32 v17, v15, 6, s43")
    poll(a, [f"global_load_dwordx4 v[{32+4*u}:{35+4*u}], v14, s[26:27] offset:{1024*u} sc1" for u in range(4)],
         list(range(32, 48)), 12, "h2")
    a.stamp(13)
    for (d, s_) in ((32, 36), (40, 44), (32, 40)):
        a(f"v_pk_add_f32 v[{d}:{d+1}], v[{d}:{d+1}], v[{s_}:{s_+1}]")
        a(f"v_pk_add_f32 v[{d+2}:{d+3}], v[{d+2}:{d+3}], v[{s_+2}:{s_+3}]")
    for k in range(4):
        a(dpp("v_add_f32", 32+k, 32+k, 32+k, "row_ror:8"))
    cross_rows_allreduce(a, "v_add_f32", [32, 33, 34, 35], [36, 37, 38, 39])
    a("v_cvt_pk_bf16_f32 v36, v32, v33"); a("v_cvt_pk_bf16_f32 v37, v34, v35")
    a("s_waitcnt lgkmcnt(0)")
    a("v_lshlrev_b32 v32, 16, v36"); a("v_and_b32 v33, 0xffff0000, v36")
    a("v_lshlrev_b32 v34, 16, v37"); a("v_and_b32 v35, 0xffff0000, v37")
    a("v_lshlrev_b32 v24, 16, v22"); a("v_and_b32 v25, 0xffff0000, v22")
    a("v_lshlrev_b32 v26, 16, v23"); a("v_and_b32 v27, 0xffff0000, v23")
    for k in range(4):
        a(f"v_add_f32 v{32+k}, v{32+k}, v{24+k}")
    a("v_cvt_pk_bf16_f32 v36, v32, v33"); a("v_cvt_pk_bf16_f32 v37, v34, v35")
    a("v_min_u32 v36, -2, v36"); a("v_min_u32 v37, -2, v37")
    a("s_mov_b64 exec, 0xff")
    store_local(a, "global_store_dwordx2 v16, v[36:37], s[26:27]")
    a("v_lshlrev_b32 v32, 16, v36"); a("v_and_b32 v33, 0xffff0000, v36")
    a("v_lshlrev_b32 v34, 16, v37"); a("v_and_b32 v35, 0xffff0000, v37")
    for k in range(4):
        a(f"ds_write_b32 v17, v{32+k} offset:{L_HL + 16*k}")
    a("s_mov_b64 exec, -1")
    a.label("L_h2_done")
    a.stamp(14)
    a("s_cmp_eq_u32 s32, 7")
    a("s_cbranch_scc1 L_dn_done")
    a("v_lshlrev_b32 v14, 9, v2")
    a("v_lshl_add_u32 v14, v13, 6, v14")
    a("v_lshl_add_u32 v14, v9, 3, v14")
    a("s_lshl_b32 s41, s32, 11"); a(f"s_add_u32 s41, s41, {L_DW}")
    a("v_add_u32 v14, s41, v14")
    a("s_lshl_b32 s41, s28, 13"); a("s_lshl_b32 s43, s32, 6"); a("s_add_u32 s41, s41, s43")
    a(f"s_add_u32 s41, s41, {WS_SM + SM_HH}")
    a("v_lshlrev_b32 v15, 9, v9")
    a("v_lshl_add_u32 v15, v2, 4, v15")
    a("v_add_u32 v15, s41, v15")
    a("s_waitcnt vmcnt(0)")
    for nu in range(2):
        for hf in range(2):
            a(f"ds_read_b64_tr_b16 v[{40+4*nu+2*hf}:{41+4*nu+2*hf}], v14 offset:{256*hf + 32*nu}")
    a("s_lshl_b32 s41, s32, 9")
    a("v_lshl_add_u32 v16, v3, 4, s41")
    poll(a, ["global_load_dwordx4 v[32:35], v15, s[26:27] sc1"], [32, 33, 34, 35], 12, "h4")
    a.stamp(15)
    a("s_waitcnt lgkmcnt(0)")
    a("v_mfma_f32_16x16x32_bf16 v[48:51], v[32:35], v[40:43], 0")
    a("v_mfma_f32_16x16x32_bf16 v[52:55], v[32:35], v[44:47], 0")
    a("s_mov_b64 exec, 0xffff")
    a(f"ds_write_b128 v16, v[48:51] offset:{L_RED + 0x2000}")
    a(f"ds_write_b128 v16, v[52:55] offset:{L_RED + 0x2000 + 256}")
    a("s_mov_b64 exec, -1")
    a.label("L_dn_done")
    a("s_waitcnt lgkmcnt(0)")
    a("s_barrier")
    a("s_cmp_lg_u32 s32, 0")
    a("s_cbranch_scc1 L_fin")
    a("v_and_b32 v14, 31, v1"); a("v_lshlrev_b32 v14, 4, v14")
    for k in range(7):
        a(f"ds_read_b128 v[{32+4*k}:{35+4*k}], v14 offset:{L_RED + 0x2000 + 512*k}")
    a(f"ds_read_b128 v[24:27], v14 offset:{L_HL}")
    a("s_lshl_b32 s41, s29, 12"); a(f"s_add_u32 s41, s41, {WS_P5}")
    a("s_lshl_b32 s43, s28, 9"); a("s_add_u32 s43, s43, s41")
    a("v_add_u32 v15, s43, v14")
    a("s_waitcnt lgkmcnt(0)")
    for (d, s_) in ((32, 36), (40, 44), (48, 52), (32, 40), (48, 56), (32, 48)):
        a(f"v_pk_add_f32 v[{d}:{d+1}], v[{d}:{d+1}], v[{s_}:{s_+1}]")
        a(f"v_pk_add_f32 v[{d+2}:{d+3}], v[{d+2}:{d+3}], v[{s_+2}:{s_+3}]")
    for k in range(4):
        a(f"v_min_u32 v{32+k}, -2, v{32+k}")
    a("s_mov_b32 exec_hi, 0")
    a("global_store_dwordx4 v15, v[32:35], s[26:27] sc1")
    a("s_mov_b32 exec_hi, -1")
    a.stamp(16)
    a("s_and_b32 s43, s29, 7")
    a("s_cmp_lg_u32 s43, s28")
    a("s_cbranch_scc1 L_fin")
    a("v_add_u32 v15, s41, v5")
    poll(a, [f"global_load_dwordx4 v[{32+4*u}:{35+4*u}], v15, s[26:27] offset:{1024*u} sc1" for u in range(4)],
         list(range(32, 48)), 12, "h5")
    a.stamp(17)
    for (d, s_) in ((32, 36), (40, 44), (32, 40)):
        a(f"v_pk_add_f32 v[{d}:{d+1}], v[{d}:{d+1}], v[{s_}:{s_+1}]")
        a(f"v_pk_add_f32 v[{d+2}:{d+3}], v[{d+2}:{d+3}], v[{s_+2}:{s_+3}]")
    for k in range(4): a(f"v_mov_b32 v{36+k}, v{32+k}")
    for k in range(4): a(f"v_permlane32_swap_b32 v{32+k}, v{36+k}")
    for k in range(4): a(f"v_add_f32 v{32+k}, v{32+k}, v{36+k}")
    for k in range(4): round_bf16(a, 32 + k)
    for k in range(4): a(f"v_add_f32 v{32+k}, v{32+k}, v{24+k}")
    for k in range(4): a(f"v_mov_b32_dpp v{36+k}, v{32+k} quad_perm:[1,1,3,3] row_mask:0xf bank_mask:0xf")
    for k in range(4): a(f"v_cvt_pk_bf16_f32 v{32+k}, v{32+k}, v{36+k}")
    a("s_lshl_b32 s43, s29, 6")
    a("v_lshl_add_u32 v15, v1, 1, s43")
    a("s_mov_b32 exec_lo, 0x55555555")
    a("s_mov_b32 exec_hi, 0")
    for k in range(4):
        a(f"global_store_dword v15, v{32+k}, s[22:23] offset:{1024*k}")
    a("s_mov_b64 exec, -1")
    a("s_cmp_lg_u32 s2, 0")
    a("s_cbranch_scc1 L_fin")
    a("s_add_u32 s43, s34, 1")
    a("v_mov_b32 v14, 0"); a("v_mov_b32 v15, s43")
    a("s_mov_b64 exec, 1")
    a("global_store_dword v14, v15, s[26:27]")
    a("s_mov_b64 exec, -1")
    a("s_branch L_fin")
    a.label("L_not_o")
    a("s_cmp_ge_u32 s29, 23")
    a("s_cbranch_scc1 L_fin")
    a("s_mul_i32 s41, s32, 229376")
    a("s_mul_i32 s42, s28, 448"); a("s_add_u32 s41, s41, s42")
    a("s_sub_u32 s42, s29, 16"); a("s_lshl_b32 s43, s42, 6"); a("s_add_u32 s41, s41, s43")
    a("s_add_u32 s16, s16, s41"); a("s_addc_u32 s17, s17, 0")
    a("s_add_u32 s18, s18, s41"); a("s_addc_u32 s19, s19, 0")
    a("v_lshrrev_b32 v14, 2, v1"); a("v_mul_u32_u24 v14, 3584, v14")
    a("v_and_b32 v15, 3, v1"); a("v_lshl_add_u32 v14, v15, 4, v14")
    a("s_lshl_b32 s41, s32, 13"); a(f"s_add_u32 s41, s41, {L_GW}")
    for u in range(4):
        if u: a(f"v_add_u32 v14, {16*3584}, v14")
        a(f"s_add_u32 m0, s41, {1024*u}")
        a(f"global_load_lds_dwordx4 v14, s[16:17]{NT}")
        a(f"s_add_u32 m0, s41, {4096 + 1024*u}")
        a(f"global_load_lds_dwordx4 v14, s[18:19]{NT}")
    a("v_lshlrev_b32 v14, 9, v2")
    a("v_lshl_add_u32 v14, v13, 6, v14")
    a("v_and_b32 v15, 1, v3"); a("v_lshl_add_u32 v14, v15, 3, v14")
    a("v_and_b32 v15, 2, v3"); a("v_lshl_add_u32 v14, v15, 11, v14")
    a("v_add_u32 v14, s41, v14")
    a("s_waitcnt vmcnt(0)")
    a.stamp(10)
    for tp in range(2):
        for tau in range(4):
            for hf in range(2):
                r = 64 + 16 * tp + 4 * tau + 2 * hf
                a(f"ds_read_b64_tr_b16 v[{r}:{r+1}], v14 offset:{2048*tp + 256*hf + 16*tau}")
    a("s_cmp_ge_u32 s32, 4")
    a("s_cbranch_scc1 L_ln2_done")
    a("s_lshl_b32 s41, s28, 13"); a("s_lshl_b32 s43, s32, 10"); a("s_add_u32 s41, s41, s43")
    a(f"s_add_u32 s41, s41, {WS_SM + SM_H}")
    a("v_add_u32 v15, s41, v5")
    poll(a, ["global_load_dwordx4 v[16:19], v15, s[26:27] sc1"], [16, 17, 18, 19], 12, "h3")
    a.stamp(11)
    layernorm_row(a, 16, 20, 28, 32)
    a(f"s_mul_i32 s41, s32, {XN_STRIDE}")
    a("v_add_u32 v15, s41, v5")
    a(f"ds_write_b128 v15, v[32:35] offset:{L_XN}")
    a.label("L_ln2_done")
    a("s_waitcnt lgkmcnt(0)")
    a("s_barrier")
    a.stamp(12)
    a(f"ds_read_b128 v[32:35], v11 offset:{L_XN}")
    a(f"ds_read_b128 v[36:39], v11 offset:{L_XN + 64}")
    a("s_lshl_b32 s41, s32, 10")
    a("v_lshl_add_u32 v15, v3, 4, s41")
    a("s_waitcnt lgkmcnt(0)")
    for tp in range(2):
        for tau in range(4):
            c = "0" if tp == 0 else f"v[{40+4*tau}:{43+4*tau}]"
            r = 64 + 16 * tp + 4 * tau
            a(f"v_mfma_f32_16x16x32_bf16 v[{40+4*tau}:{43+4*tau}], v[{32+4*tp}:{35+4*tp}], v[{r}:{r+3}], {c}")
    a("s_mov_b64 exec, 0xffff")
    for tau in range(4):
        a(f"ds_write_b128 v15, v[{40+4*tau}:{43+4*tau}] offset:{L_RED + 256*tau}")
    a("s_mov_b64 exec, -1")
    a("s_waitcnt lgkmcnt(0)")
    a("s_barrier")
    a("s_cmp_ge_u32 s32, 4")
    a("s_cbranch_scc1 L_fin")
    a("s_lshl_b32 s41, s32, 2")
    a("v_add_u32 v15, s41, v5")
    for k in range(8):
        a(f"ds_read_b32 v{32+k}, v15 offset:{L_RED + 1024*k}")
    a("s_lshl_b32 s41, s28, 13"); a("s_lshl_b32 s43, s32, 9"); a("s_add_u32 s41, s41, s43")
    a("s_lshl_b32 s43, s42, 6"); a("s_add_u32 s41, s41, s43")
    a(f"s_add_u32 s41, s41, {WS_SM + SM_HH}")
    a("v_lshlrev_b32 v16, 4, v2"); a("v_lshl_add_u32 v16, v3, 1, v16"); a("v_add_u32 v16, s41, v16")
    a(f"s_mov_b32 s41, {LOG2E | 0x80000000}")
    a("s_waitcnt lgkmcnt(0)")
    a("v_add_f32 v32, v32, v33"); a("v_add_f32 v34, v34, v35"); a("v_add_f32 v36, v36, v37"); a("v_add_f32 v38, v38, v39")
    a("v_add_f32 v32, v32, v34"); a("v_add_f32 v36, v36, v38"); a("v_add_f32 v32, v32, v36")
    round_bf16(a, 32)
    a("v_mov_b32_dpp v33, v32 row_ror:8 row_mask:0xf bank_mask:0xf")
    a("v_mul_f32 v34, s41, v32")
    a("v_exp_f32 v34, v34")
    a("v_add_f32 v34, 1.0, v34")
    a("v_rcp_f32 v34, v34")
    round_bf16(a, 34)
    a("v_mul_f32 v34, v34, v33")
    a("v_mov_b32_dpp v35, v34 quad_perm:[1,1,3,3] row_mask:0xf bank_mask:0xf")
    a("v_cvt_pk_bf16_f32 v34, v34, v35")
    a("v_min_u32 v34, -2, v34")
    a("s_mov_b32 exec_lo, 0x00550055")
    a("s_mov_b32 exec_hi, 0x00550055")
    store_local(a, "global_store_dword v16, v34, s[26:27]")
    a("s_mov_b64 exec, -1")
    a.stamp(13)
    a.label("L_fin")
    if stamps:
        a.stamp(20)
        a("s_lshl_b32 s41, s2, 11"); a("s_lshl_b32 s42, s32, 8"); a("s_add_u32 s41, s41, s42")
        a(f"s_add_u32 s41, s41, {WS_ST}")
        a("v_lshl_add_u32 v14, v1, 2, s41")
        a("global_store_dword v14, v255, s[26:27]")
    a.label("L_end")
    a.lines = hz.fix(a.lines)
    return a

def emit(fname, **kw):
    a = build(**kw)
    txt = kernel_file([(NAME + "_kernel", a, 256, 102, 256)], [(NAME + "_kernel", (256, 1, 1), (512, 1, 1), LDS_BYTES)])
    txt = txt.replace("CODE_KB_MASK", "7")
    txt = txt.replace("    s_endpgm\n", "    s_endpgm\n    .fill 512, 4, 0xbf810000\n")
    open(fname, "w").write(txt)

if __name__ == "__main__":
    emit("v1.s")
    emit("v1st.s", stamps=True)
```

```python
import re

def regs_of(op):
    op = op.strip()
    op = re.sub(r'^-', '', op)
    m = re.match(r'^(?:abs|neg)\((.*)\)$', op)
    if m: op = m.group(1)
    op = op.strip('|')
    m = re.match(r'^([vsa])(\d+)$', op)
    if m: return {(m.group(1), int(m.group(2)))}
    m = re.match(r'^([vsa])\[(\d+):(\d+)\]$', op)
    if m: return {(m.group(1), k) for k in range(int(m.group(2)), int(m.group(3)) + 1)}
    if op in ('vcc', 'vcc_lo', 'vcc_hi'): return {('s', 106), ('s', 107)}
    if op in ('exec', 'exec_lo', 'exec_hi'): return {('exec', 0)}
    if op == 'm0': return {('m0', 0)}
    return set()

TRANS = ('v_exp_f32', 'v_log_f32', 'v_rcp_f32', 'v_rsq_f32', 'v_sqrt_f32', 'v_sin_f32', 'v_cos_f32', 'v_rcp_iflag_f32')

class Ins:
    def __init__(self, text):
        self.text = text
        t = text.split(';')[0].strip()
        parts = t.split(None, 1)
        self.mn = parts[0]
        rest = parts[1] if len(parts) > 1 else ''
        ops = []
        depth = 0; cur = ''
        for ch in rest:
            if ch in '[(': depth += 1
            if ch in '])': depth -= 1
            if ch == ',' and depth == 0:
                ops.append(cur.strip()); cur = ''
            else:
                cur += ch
        if cur.strip(): ops.append(cur.strip())
        self.mods = ''
        if ops:
            last = ops[-1].split(None, 1)
            ops[-1] = last[0]
            if len(last) > 1: self.mods = last[1]
        self.ops = ops
        mn = self.mn
        self.is_mfma = mn.startswith('v_mfma')
        self.is_valu = mn.startswith('v_') and not self.is_mfma
        self.is_trans = any(mn.startswith(x) for x in TRANS)
        self.is_dpp = '_dpp' in mn or any(k in self.mods for k in ('quad_perm', 'row_', 'wave_'))
        self.is_perml = mn.startswith('v_permlane')
        self.is_rdlane = mn.startswith('v_readlane') or mn.startswith('v_readfirstlane')
        self.is_wrlane = mn.startswith('v_writelane')
        self.is_vmem = mn.startswith(('global_', 'buffer_', 'flat_'))
        self.is_ds = mn.startswith('ds_')
        self.is_smem = mn.startswith(('s_load', 's_atomic', 's_buffer', 's_memtime', 's_memrealtime'))
        self.is_salu = mn.startswith('s_') and not self.is_smem
        self.ldsdma = self.is_vmem and ('_lds_' in mn or re.search(r'\blds\b', self.mods) is not None)
        R = [regs_of(o) for o in ops]
        self.wr = set(); self.rd = set(); self.srcc = set(); self.ab = set(); self.stdata = set()
        if self.is_mfma:
            self.wr = R[0]; self.ab = R[1] | R[2]; self.srcc = R[3]; self.rd = self.ab | self.srcc
        elif self.is_valu:
            self.wr = set(R[0]) if R else set()
            srcs = R[1:]
            if mn.startswith(('v_add_co', 'v_sub_co', 'v_addc_co', 'v_subb_co', 'v_subrev_co', 'v_div_scale', 'v_mad_u64')):
                self.wr |= R[1]; srcs = R[2:]
            for s in srcs: self.rd |= s
            if self.is_perml: self.wr |= R[1]; self.rd |= R[0]
            if mn.startswith(('v_fmac', 'v_dot2c', 'v_writelane', 'v_pk_fmac')) or self.is_dpp: self.rd |= R[0]
            if mn.startswith('v_cndmask') and len(ops) == 3: self.rd |= regs_of('vcc')
        elif self.is_vmem or self.is_ds:
            isload = ('load' in mn or mn.startswith('ds_read') or 'permute' in mn or 'swizzle' in mn or ('atomic' in mn and 'sc0' in self.mods) or '_rtn' in mn) and not self.ldsdma
            if isload:
                self.wr = R[0]
                for s in R[1:]: self.rd |= s
            else:
                for s in R: self.rd |= s
                if 'store_dwordx4' in mn or 'store_dwordx3' in mn:
                    self.stdata = R[1] if mn.startswith('global') else R[0]
            if self.ldsdma: self.rd |= {('m0', 0)}
        elif self.is_smem:
            if mn.startswith('s_atomic'):
                for s in R: self.rd |= s
                if 'glc' in self.mods: self.wr = R[0]
            else:
                self.wr = R[0] if R else set()
                for s in R[1:]: self.rd |= s
        elif self.is_salu:
            if mn.startswith(('s_cmp', 's_cbranch', 's_branch', 's_waitcnt', 's_barrier', 's_nop', 's_sleep', 's_setprio', 's_endpgm', 's_bitcmp')):
                for s in R: self.rd |= s
            else:
                self.wr = R[0] if R else set()
                for s in R[1:]: self.rd |= s
                if 'saveexec' in mn: self.wr = self.wr | {('exec', 0)}
        self.states = 1
        if mn == 's_nop': self.states = int(ops[0], 0) + 1
        if self.is_mfma:
            self.passes = 4 if '16x16x32' in mn or '16x16x16' in mn else (8 if '32x32x16' in mn or '16x16x4_f32' in mn else 16)

def need(p, c):
    n = 0
    pv = {r for r in p.wr if r[0] in ('v', 'a')}
    ps = {r for r in p.wr if r[0] == 's'}
    if p.is_valu:
        if pv & c.rd:
            if c.is_valu and (c.is_dpp or c.is_perml): n = max(n, 2)
            if c.is_rdlane: n = max(n, 1)
            if c.is_mfma: n = max(n, 2)
            if p.is_trans: n = max(n, 1)
        if ps & c.rd:
            if c.is_valu: n = max(n, 4 if (c.is_rdlane or c.is_wrlane) else 2)
            if c.is_vmem or c.is_smem: n = max(n, 5)
            if c.is_salu: n = max(n, 1)
    if p.is_mfma:
        d = {4: 8, 8: 12, 16: 20}[p.passes]
        if c.is_mfma:
            if pv & c.ab: n = max(n, d)
            if pv & c.srcc and c.srcc != pv: n = max(n, d - 2)
            if pv & c.wr and c.srcc != pv: n = max(n, d)
        elif (pv & (c.rd | c.wr)): n = max(n, d)
        if c.is_valu and (p.srcc & c.wr): n = max(n, {4: 3, 8: 7, 16: 15}[p.passes])
    if p.is_salu and ('m0', 0) in p.wr and c.ldsdma: n = max(n, 1)
    if p.stdata and (p.stdata & c.wr): n = max(n, 2)
    return n


def _req(hist, ins):
    dist = 0; req = 0
    for p in reversed(hist[-24:]):
        r = need(p, ins) - dist
        if r > req: req = r
        dist += p.states
        if dist >= 20: break
    return req

def fix(lines):
    out = []
    hists = [[]]
    pending = {}
    seen = set()
    back = []
    for ln in lines:
        s = ln.strip()
        if not s or s.startswith(';') or s.startswith('.'):
            out.append(ln); continue
        if s.endswith(':'):
            lab = s[:-1]
            seen.add(lab)
            hists += pending.pop(lab, [])
            out.append(ln); continue
        ins = Ins(s)
        req = max(_req(h, ins) for h in hists) if hists else 0
        while req > 0:
            k = min(req, 16)
            nop = Ins(f"s_nop {k-1}")
            out.append(f"    s_nop {k-1}")
            for h in hists: h.append(nop)
            req -= k
        out.append(ln)
        for h in hists: h.append(ins)
        hists = [h[-24:] for h in hists]
        uniq = []
        for h in hists:
            if not any(len(h) == len(u) and all(x is y for x, y in zip(h, u)) for u in uniq): uniq.append(h)
        hists = uniq
        if ins.mn.startswith(('s_cbranch', 's_branch')):
            tgt = ins.ops[0]
            if tgt in seen:
                back.append((tgt, [list(h) for h in hists]))
            else:
                pending.setdefault(tgt, []).extend(list(h) for h in hists)
            if ins.mn == 's_branch':
                hists = [[]]
        if ins.mn == 's_endpgm':
            hists = [[]]
    idx = {}
    for k, ln in enumerate(out):
        s = ln.strip()
        if s.endswith(':') and not s.startswith(';'): idx[s[:-1]] = k
    for tgt, hs in back:
        for h in hs:
            h = list(h); k = idx[tgt] + 1; st = 0
            while st < 20 and k < len(out):
                s = out[k].strip(); k += 1
                if not s or s.startswith(';') or s.startswith('.') or s.endswith(':'): continue
                ins = Ins(s)
                r = _req(h, ins)
                if r > 0:
                    raise RuntimeError(f"backward-branch hazard at {tgt}: '{s}' needs {r} more wait states")
                h.append(ins); st += ins.states
                if ins.mn in ('s_branch', 's_endpgm'): break
    return out
```

```python
import sys
from asmlib import *
import hz
from gen1 import K, dpp, row16_allreduce, cross_rows_allreduce, round_bf16, layernorm_row, poll, store_local

WS_ID = 0x2000
WS_CERT = 0x1000
WS_Q  = 0x10000
WS_O  = 0x20000
WS_SM = 0x60000
SM_ML, SM_H, SM_HH = 0x0, 0x400, 0x1400
WS_P2 = 0x80000
WS_P5 = 0xC0000
WS_ST = 0x100000
L_K, L_V, L_RED, L_XR, L_XN = 0x0, 0x10000, 0x20000, 0x24000, 0x25000
L_WQ = L_V
XN_STRIDE = 1040
L_QL, L_PL, L_MX, L_LS, L_UF, L_FL, L_HL = 0x26100, 0x26500, 0x26D00, 0x26D80, 0x26E00, 0x26E40, 0x26F00
LDS_BYTES = 0x27100
HI = 0x20000
F_WQ, F_K, F_V1, F_Q, F_S1, F_S2, F_S3 = 0, 4, 8, 12, 16, 20, 24
L_GW = L_K
L_DW = L_K
POLL_MAX = 200000
LOG2E = 0x3fb8aa3b
SCALE = 0x3db504f3
NCW = 8

def wait_flag(a, off, val, name, sleep=1):
    lp = a.newlabel("L_wf_" + name); dn = a.newlabel("L_wfd_" + name)
    a(f"s_mov_b32 s3, {POLL_MAX*8}")
    a.label(lp)
    a(f"ds_read_b32 v7, v6 offset:{off}")
    a("s_waitcnt lgkmcnt(0)")
    a("v_readfirstlane_b32 s39, v7")
    a(f"s_cmp_ge_u32 s39, {val}")
    a(f"s_cbranch_scc1 {dn}")
    if sleep: a(f"s_sleep {sleep}")
    a("s_sub_u32 s3, s3, 1")
    a(f"s_cbranch_scc0 {lp}")
    a.label(dn)

def signal(a, off):
    a("s_mov_b64 exec, 1")
    a(f"ds_add_u32 v6, v8 offset:{off}")
    a("s_mov_b64 exec, -1")

def csync(a, off, name):
    signal(a, off)
    wait_flag(a, off, NCW, name, sleep=0)

def build(stamps=False, nt=True, fwq_after=24, fk_after=40, fq_after=40):
    a = K(stamps)
    NT = " nt" if nt else ""
    a("s_load_dwordx16 s[4:19], s[0:1], 0")
    a("s_load_dwordx8 s[20:27], s[0:1], 64")
    a("s_cmp_ge_u32 s2, 256")
    a("s_cbranch_scc1 L_end")
    if stamps:
        a("v_mov_b32 v127, -1")
        a("s_memrealtime s[100:101]")
    a("v_lshrrev_b32 v4, 6, v0")
    a("v_and_b32 v1, 63, v0")
    a("v_readfirstlane_b32 s32, v4")
    a("s_and_b32 s28, s2, 7")
    a("s_lshr_b32 s29, s2, 3")
    a("s_lshr_b32 s30, s29, 3")
    a("s_and_b32 s31, s29, 3")
    a("s_lshl_b32 s36, s30, 2")
    a("s_add_u32 s31, s31, s36")
    a("v_lshrrev_b32 v2, 4, v1")
    a("v_and_b32 v3, 15, v1")
    a("v_lshlrev_b32 v5, 4, v1")
    a(f"v_mov_b32 v6, {L_FL}")
    a("s_cmp_lg_u32 s32, 0")
    a("s_cbranch_scc1 L_compute")
    a("s_setprio 3")
    a("v_lshrrev_b32 v9, 2, v1")
    a("v_lshlrev_b32 v9, 13, v9")
    a("v_and_b32 v7, 3, v1")
    a("v_lshl_add_u32 v9, v7, 4, v9")
    a("s_lshl_b32 s37, s28, 10")
    a("s_lshl_b32 s38, s31, 6")
    a("s_add_u32 s37, s37, s38")
    a(f"s_mov_b32 m0, {L_WQ}")
    a("v_mov_b32 v8, 0")
    a("v_lshl_add_u32 v7, v3, 2, v6")
    a("ds_write_b32 v7, v8")
    a("s_waitcnt lgkmcnt(0)")
    if stamps: a("v_writelane_b32 v127, s100, 0")
    a("s_bitcmp0_b32 s29, 2")
    a("s_cbranch_scc1 L_no_wq")
    a("s_add_u32 s10, s10, s37"); a("s_addc_u32 s11, s11, 0")
    a("s_mov_b32 s3, 32")
    a.label("L_wq_loop")
    a(f"global_load_lds_dwordx4 v9, s[10:11]{NT}")
    a("s_add_u32 m0, m0, 1024")
    a("s_add_u32 s10, s10, 0x20000"); a("s_addc_u32 s11, s11, 0")
    a("s_sub_u32 s3, s3, 1")
    a("s_cmp_lg_u32 s3, 0")
    a("s_cbranch_scc1 L_wq_loop")
    a.label("L_no_wq")
    a("s_lshl_b32 s36, s30, 24")
    a("s_lshl_b32 s37, s28, 21"); a("s_add_u32 s36, s36, s37")
    a("s_and_b32 s37, s29, 7"); a("s_lshl_b32 s37, s37, 16"); a("s_add_u32 s36, s36, s37")
    a(f"s_add_u32 s36, s36, {6144*256}")
    a("s_add_u32 s6, s6, s36"); a("s_addc_u32 s7, s7, 0")
    a("s_add_u32 s8, s8, s36"); a("s_addc_u32 s9, s9, 0")
    a("v_lshlrev_b32 v7, 8, v2")
    for u in range(4):
        a(f"v_add_u32 v8, {4*u}, v2")
        a(f"v_xor_b32 v8, v8, v3")
        a(f"v_lshl_add_u32 v{10+u}, v8, 4, v7")
    for u in range(2):
        a(f"v_lshl_add_u32 v8, v2, 1, {8*u}")
        a(f"v_xor_b32 v8, v8, v3")
        a(f"v_lshl_add_u32 v{14+u}, v8, 4, v7")
    a("v_mov_b32 v8, 1")
    def kv_loop(base, regs, n, lab):
        a(f"s_mov_b32 s3, {n}")
        a.label(lab)
        for u in range(4):
            a(f"global_load_lds_dwordx4 v{regs[u % len(regs)]}, s[{base}:{base+1}] offset:{1024*u}{NT}")
        a("s_add_u32 m0, m0, 4096")
        a(f"s_add_u32 s{base}, s{base}, 4096"); a(f"s_addc_u32 s{base+1}, s{base+1}, 0")
        a("s_sub_u32 s3, s3, 1")
        a("s_cmp_lg_u32 s3, 0")
        a(f"s_cbranch_scc1 {lab}")
    a(f"s_mov_b32 m0, {L_K}")
    kv_loop(6, [10, 11, 12, 13], fwq_after // 4, "L_k1")
    a("s_barrier")
    a("s_bitcmp0_b32 s29, 2")
    a("s_cbranch_scc1 L_k_go")
    a(f"s_waitcnt vmcnt({fwq_after})")
    a(f"ds_write_b32 v6, v8 offset:{F_WQ}")
    a.stamp(1)
    wait_flag(a, F_Q, 2, "lq")
    a.label("L_k_go")
    kv_loop(6, [10, 11, 12, 13], 16 - fwq_after // 4, "L_k2")
    kv_loop(8, [14, 15], 4, "L_v0")
    a("s_waitcnt vmcnt(40)")
    a("v_mov_b32 v7, 2")
    a(f"ds_write_b32 v6, v7 offset:{F_Q}")
    kv_loop(8, [14, 15], fk_after // 4 - 4, "L_v1")
    a(f"s_waitcnt vmcnt({fk_after})")
    a(f"ds_write_b32 v6, v8 offset:{F_K}")
    a.stamp(2)
    kv_loop(8, [14, 15], 16 - fk_after // 4, "L_v2")
    a.stamp(3)
    a("s_waitcnt vmcnt(16)")
    a(f"ds_write_b32 v6, v8 offset:{F_V1}")
    a.stamp(4)
    a("s_waitcnt vmcnt(0)")
    a.stamp(5)
    a("s_barrier")
    a("s_branch L_fin")
    a.label("L_compute")
    a("s_sub_u32 s32, s32, 1")
    a("v_mov_b32 v8, 1")
    a("v_and_b32 v9, 3, v3")
    a("v_lshrrev_b32 v13, 2, v3")
    a("v_mov_b32 v16, -1"); a("v_mov_b32 v17, -1"); a("v_mov_b32 v18, -1"); a("v_mov_b32 v19, -1")
    a("v_lshlrev_b32 v10, 6, v1")
    a("s_waitcnt lgkmcnt(0)")
    if stamps: a("v_writelane_b32 v127, s100, 0")
    a("s_load_dword s34, s[26:27], 0")
    a("s_cmp_eq_u32 s32, 2")
    a("s_cbranch_scc1 L_p_pf")
    a("s_cmp_ge_u32 s32, 2")
    a("s_cbranch_scc1 L_p_done")
    for u in range(4):
        a(f"global_load_dwordx4 v[{32+4*u}:{35+4*u}], v10, s[4:5] offset:{16*u}")
    a("s_bitcmp0_b32 s29, 2")
    a("s_cbranch_scc1 L_p_done")
    a("s_lshl_b32 s42, s31, 1"); a("s_add_u32 s42, s42, s32")
    a("s_lshl_b32 s39, s28, 15"); a("s_lshl_b32 s40, s42, 10"); a("s_add_u32 s39, s39, s40")
    a(f"s_add_u32 s39, s39, {WS_O}")
    a("v_add_u32 v11, s39, v5")
    a("global_store_dwordx4 v11, v[16:19], s[26:27] sc1")
    a("s_lshl_b32 s39, s42, 13"); a("s_lshl_b32 s40, s28, 9"); a("s_add_u32 s39, s39, s40")
    a(f"s_add_u32 s39, s39, {WS_P2}")
    a("v_and_b32 v11, 31, v1"); a("v_lshlrev_b32 v11, 4, v11")
    a("v_lshrrev_b32 v12, 5, v1"); a("v_lshl_add_u32 v11, v12, 12, v11")
    a("v_add_u32 v11, s39, v11")
    a("global_store_dwordx4 v11, v[16:19], s[26:27] sc1")
    a("s_lshl_b32 s39, s28, 13"); a("s_lshl_b32 s40, s42, 8"); a("s_add_u32 s39, s39, s40")
    a(f"s_add_u32 s39, s39, {WS_SM}")
    a("s_lshr_b32 s40, s42, 1"); a("s_lshl_b32 s40, s40, 12")
    a("s_lshl_b32 s41, s28, 9"); a("s_add_u32 s40, s40, s41")
    a("s_and_b32 s41, s42, 1"); a("s_lshl_b32 s41, s41, 8"); a("s_add_u32 s40, s40, s41")
    a(f"s_add_u32 s40, s40, {WS_P5}")
    a("v_and_b32 v12, 16, v1")
    a("v_cmp_eq_u32 vcc, 0, v12")
    a("v_mov_b32 v11, s39"); a("v_mov_b32 v12, s40")
    a("v_cndmask_b32 v11, v12, v11, vcc")
    a("v_lshl_add_u32 v11, v3, 4, v11")
    a("global_store_dwordx4 v11, v[16:19], s[26:27] sc1")
    a("s_branch L_p_nobar")
    a.label("L_p_pf")
    a("s_getpc_b64 s[14:15]")
    a("s_and_b32 s39, s29, CODE_KB_MASK"); a("s_lshl_b32 s39, s39, 10")
    a("v_add_u32 v11, s39, v5")
    a("global_load_dwordx4 v[32:35], v11, s[14:15]")
    a.label("L_p_done")
    a("s_barrier")
    a.label("L_p_nobar")
    a("s_getreg_b32 s35, hwreg(HW_REG_XCC_ID, 0, 4)")
    a("s_waitcnt lgkmcnt(0)")
    a("s_mul_i32 s33, s34, 0x9e3779b1")
    a("s_add_u32 s33, s33, 0x7f4a7c15")
    a("s_and_b32 s33, s33, 0xfffffff0")
    a("s_or_b32 s33, s33, s35")
    a(f"v_mul_u32_u24 v11, {XN_STRIDE}, v9")
    a("v_lshl_add_u32 v11, v2, 4, v11")
    a(f"v_add_u32 v11, {L_XN}, v11")
    a("s_cmp_lg_u32 s32, 3")
    a("s_cbranch_scc1 L_noid")
    a("s_lshl_b32 s39, s28, 7"); a("s_lshl_b32 s40, s29, 2"); a("s_add_u32 s39, s39, s40")
    a(f"s_add_u32 s39, s39, {WS_ID}")
    a("s_add_u32 s14, s26, s39"); a("s_addc_u32 s15, s27, 0")
    a("s_mov_b32 s40, s33")
    a("s_atomic_swap s40, s[14:15], 0")
    a.label("L_noid")
    a("s_cmp_ge_u32 s32, 2")
    a("s_cbranch_scc1 L_q_done")
    a("s_bitcmp1_b32 s29, 2")
    a("s_cbranch_scc1 L_qproj")
    a("s_waitcnt vmcnt(0)")
    a(f"v_add_u32 v12, {L_XR}, v10")
    for u in range(4):
        a(f"ds_write_b128 v12, v[{32+4*u}:{35+4*u}] offset:{16*u}")
    a("s_branch L_q_done")
    a.label("L_qproj")
    a("s_waitcnt vmcnt(3)")
    a.stamp(1)
    F = 64
    for k in range(16):
        a(f"v_lshlrev_b32 v{F+2*k}, 16, v{32+k}")
        a(f"v_and_b32 v{F+2*k+1}, 0xffff0000, v{32+k}")
    a(f"v_pk_add_f32 v[20:21], v[{F}:{F+1}], v[{F+2}:{F+3}]")
    a(f"v_pk_add_f32 v[22:23], v[{F+4}:{F+5}], v[{F+6}:{F+7}]")
    for k in range(4, 16, 2):
        a(f"v_pk_add_f32 v[20:21], v[20:21], v[{F+2*k}:{F+2*k+1}]")
        a(f"v_pk_add_f32 v[22:23], v[22:23], v[{F+2*k+2}:{F+2*k+3}]")
    a("v_pk_add_f32 v[20:21], v[20:21], v[22:23]")
    a("v_add_f32 v20, v20, v21")
    row16_allreduce(a, "v_add_f32", [20])
    a("v_mul_f32 v20, 0x3b000000, v20")
    a("v_mov_b32 v22, 0"); a("v_mov_b32 v23, 0")
    for k in range(32):
        a(f"v_sub_f32 v{24+(k&1)}, v{F+k}, v20")
        a(f"v_fmac_f32 v{22+(k&1)}, v{24+(k&1)}, v{24+(k&1)}")
    a("v_add_f32 v22, v22, v23")
    row16_allreduce(a, "v_add_f32", [22])
    a("v_mul_f32 v22, 0x3b000000, v22")
    round_bf16(a, 20); round_bf16(a, 22)
    a("v_add_f32 v22, 0x3727c5ac, v22")
    round_bf16(a, 22)
    a("v_sqrt_f32 v22, v22")
    round_bf16(a, 22)
    a("v_rcp_f32 v22, v22")
    for k in range(32):
        a(f"v_sub_f32 v{F+k}, v{F+k}, v20")
    for k in range(16):
        a(f"v_cvt_pk_bf16_f32 v{32+k}, v{F+2*k}, v{F+2*k+1}")
    for k in range(16):
        a(f"v_lshlrev_b32 v{F+2*k}, 16, v{32+k}")
        a(f"v_and_b32 v{F+2*k+1}, 0xffff0000, v{32+k}")
    for k in range(32):
        a(f"v_mul_f32 v{F+k}, v{F+k}, v22")
    for k in range(16):
        a(f"v_cvt_pk_bf16_f32 v{32+k}, v{F+2*k}, v{F+2*k+1}")
    a(f"v_mul_u32_u24 v12, {XN_STRIDE}, v2")
    a("v_lshl_add_u32 v12, v3, 6, v12")
    a(f"v_add_u32 v12, {L_XN}, v12")
    for u in range(4):
        a(f"ds_write_b128 v12, v[{32+4*u}:{35+4*u}] offset:{16*u}")
    a("v_lshlrev_b32 v12, 9, v2")
    a("v_lshl_add_u32 v12, v13, 6, v12")
    a("v_lshl_add_u32 v12, v9, 3, v12")
    a("s_lshl_b32 s39, s32, 5"); a(f"s_add_u32 s39, s39, {L_WQ}")
    a("v_add_u32 v12, s39, v12")
    a("s_lshl_b32 s39, s28, 13"); a("s_lshl_b32 s40, s31, 7"); a("s_add_u32 s39, s39, s40")
    a("s_lshl_b32 s40, s32, 6"); a("s_add_u32 s39, s39, s40")
    a(f"s_add_u32 s39, s39, {WS_Q}")
    a("v_lshlrev_b32 v14, 11, v2")
    a("v_lshl_add_u32 v14, v3, 2, v14")
    a("v_add_u32 v14, s39, v14")
    a("v_cmp_eq_u32 s[44:45], 1, v2")
    a("v_cmp_eq_u32 s[46:47], 2, v2")
    a("v_cmp_eq_u32 s[48:49], 3, v2")
    a("v_mov_b32 v25, s33")
    a.stamp(2)
    a("s_barrier")
    wait_flag(a, F_WQ, 1, "wq")
    a.stamp(3)
    for blk in range(4):
        A = 32 + 32 * (blk & 1); B = A + 16
        for u in range(4):
            ks = 4 * blk + u
            a(f"ds_read_b128 v[{A+4*u}:{A+4*u+3}], v11 offset:{64*ks}")
            a(f"ds_read_b64_tr_b16 v[{B+4*u}:{B+4*u+1}], v12 offset:{2048*ks}")
            a(f"ds_read_b64_tr_b16 v[{B+4*u+2}:{B+4*u+3}], v12 offset:{2048*ks + 256}")
        if blk:
            pA = 32 + 32 * ((blk - 1) & 1); pB = pA + 16
            a("s_waitcnt lgkmcnt(12)")
            for u in range(4):
                c = "0" if (blk == 1 and u == 0) else "v[20:23]"
                a(f"v_mfma_f32_16x16x32_bf16 v[20:23], v[{pA+4*u}:{pA+4*u+3}], v[{pB+4*u}:{pB+4*u+3}], {c}")
    a("s_waitcnt lgkmcnt(0)")
    for u in range(4):
        a(f"v_mfma_f32_16x16x32_bf16 v[20:23], v[{64+4*u}:{67+4*u}], v[{80+4*u}:{83+4*u}], v[20:23]")
    a("v_cndmask_b32 v20, v20, v21, s[44:45]")
    a("v_cndmask_b32 v20, v20, v22, s[46:47]")
    a("v_cndmask_b32 v20, v20, v23, s[48:49]")
    a("v_mov_b32_dpp v21, v20 quad_perm:[1,1,3,3] row_mask:0xf bank_mask:0xf")
    a("v_cvt_pk_bf16_f32 v24, v20, v21")
    a("s_waitcnt vmcnt(0)")
    a("s_mov_b32 exec_lo, 0x55555555")
    a("s_mov_b32 exec_hi, 0x55555555")
    a("global_store_dwordx2 v14, v[24:25], s[26:27] sc1")
    a("s_mov_b64 exec, -1")
    signal(a, F_Q)
    a.stamp(4)
    a.label("L_q_done")
    wait_flag(a, F_Q, 2, "q", sleep=2)
    a("s_lshl_b32 s39, s28, 13"); a("s_lshl_b32 s40, s30, 11"); a("s_add_u32 s39, s39, s40")
    a("s_lshl_b32 s40, s32, 8"); a("s_add_u32 s39, s39, s40")
    a(f"s_add_u32 s39, s39, {WS_Q}")
    a("s_add_u32 s14, s26, s39"); a("s_addc_u32 s15, s27, 0")
    a(f"s_mov_b32 s3, {POLL_MAX}")
    a.label("L_qpoll")
    a("s_sleep 6")
    for k in range(4):
        a(f"s_load_dwordx16 s[{36+16*k}:{51+16*k}], s[14:15], {64*k} glc")
    a("s_waitcnt lgkmcnt(0)")
    a("s_xor_b32 s35, s37, s33")
    for k in range(1, 32):
        a(f"s_xor_b32 s{37+2*k}, s{37+2*k}, s33")
        a(f"s_or_b32 s35, s35, s{37+2*k}")
    a("s_cmp_lt_u32 s35, 16")
    a("s_cbranch_scc1 L_qok")
    a("s_sub_u32 s3, s3, 1")
    a("s_cbranch_scc0 L_qpoll")
    a.label("L_qok")
    for k in range(32):
        a(f"v_writelane_b32 v12, s{36+2*k}, {k}")
    a("s_cmp_lg_u32 s32, 7")
    a("s_cbranch_scc1 L_idok")
    a("s_lshl_b32 s39, s28, 7"); a(f"s_add_u32 s39, s39, {WS_ID}")
    a("s_add_u32 s14, s26, s39"); a("s_addc_u32 s15, s27, 0")
    a(f"s_mov_b32 s3, {POLL_MAX}")
    a.label("L_idpoll")
    a("s_load_dwordx16 s[36:51], s[14:15], 0 glc")
    a("s_load_dwordx16 s[52:67], s[14:15], 64 glc")
    a("s_waitcnt lgkmcnt(0)")
    a("s_xor_b32 s35, s36, s33")
    for k in range(1, 32):
        a(f"s_xor_b32 s{36+k}, s{36+k}, s33")
        a(f"s_or_b32 s35, s35, s{36+k}")
    a("s_cmp_lt_u32 s35, 16")
    a("s_cbranch_scc1 L_idok")
    a("s_sleep 6")
    a("s_sub_u32 s3, s3, 1")
    a("s_cbranch_scc0 L_idpoll")
    a.label("L_idok")
    a("v_writelane_b32 v12, s35, 32")
    a("s_lshl_b32 s39, s32, 7")
    a(f"s_add_u32 s39, s39, {L_QL}")
    a("v_lshl_add_u32 v14, v1, 2, s39")
    a("s_lshl_b32 s39, s32, 2")
    a(f"s_add_u32 s39, s39, {L_UF}")
    a("v_writelane_b32 v14, s39, 32")
    a("s_mov_b32 exec_hi, 1")
    a("ds_write_b32 v14, v12")
    a("s_mov_b32 exec_hi, -1")
    a.stamp(5)
    a("v_lshlrev_b32 v14, 8, v9")
    a("v_lshl_add_u32 v14, v2, 4, v14")
    a(f"v_add_u32 v14, {L_QL}, v14")
    a("v_and_b32 v15, 7, v1"); a("v_lshlrev_b32 v15, 2, v15")
    a(f"v_add_u32 v15, {L_UF}, v15")
    a("s_lshl_b32 s39, s32, 13")
    a("v_lshl_add_u32 v12, v3, 8, s39")
    for t in range(4):
        a(f"v_add_u32 v24, {4*t}, v2")
        a("v_xor_b32 v24, v24, v3")
        a(f"v_lshl_add_u32 v{20+t}, v24, 4, v12")
    csync(a, F_S1, "s1")
    a.stamp(6)
    for t in range(4):
        a(f"ds_read_b128 v[{64+4*t}:{67+4*t}], v14 offset:{64*t}")
    a("ds_read_b32 v16, v15")
    a("s_waitcnt lgkmcnt(0)")
    a("v_cmp_ne_u32 vcc, 0, v16")
    a("s_or_b32 s35, vcc_lo, vcc_hi")
    a("s_cmp_lg_u32 s29, 0")
    a("s_cbranch_scc1 L_nocert")
    a("s_lshl_b32 s39, s32, 7"); a("s_lshl_b32 s40, s28, 2"); a("s_add_u32 s39, s39, s40")
    a(f"s_add_u32 s39, s39, {WS_CERT}")
    a("s_add_u32 s14, s26, s39"); a("s_addc_u32 s15, s27, 0")
    a("s_mov_b32 s40, s33")
    a("s_atomic_swap s40, s[14:15], 0")
    a.label("L_nocert")
    wait_flag(a, F_K, 1, "k")
    a.stamp(7)
    for tau in range(2):
        for t in range(4):
            r = 32 + 16 * tau + 4 * t
            a(f"ds_read_b128 v[{r}:{r+3}], v{20+t} offset:{4096*tau}")
    S = 80
    for tau in range(2):
        for t in range(4):
            r = 32 + 16 * tau + 4 * t
            a(f"s_waitcnt lgkmcnt({7 - 4*tau - t})")
            c = "0" if t == 0 else f"v[{S+4*tau}:{S+3+4*tau}]"
            a(f"v_mfma_f32_16x16x32_bf16 v[{S+4*tau}:{S+3+4*tau}], v[{r}:{r+3}], v[{64+4*t}:{67+4*t}], {c}")
    a(f"s_mov_b32 s39, {SCALE}")
    for k in range(4):
        a(f"v_cvt_pk_bf16_f32 v{20+k}, v{S+2*k}, v{S+1+2*k}")
    for k in range(4):
        a(f"v_lshlrev_b32 v{S+2*k}, 16, v{20+k}")
        a(f"v_and_b32 v{S+1+2*k}, 0xffff0000, v{20+k}")
    for k in range(8):
        a(f"v_mul_f32 v{S+k}, s39, v{S+k}")
    for k in range(4):
        a(f"v_cvt_pk_bf16_f32 v{20+k}, v{S+2*k}, v{S+1+2*k}")
    for k in range(4):
        a(f"v_lshlrev_b32 v{S+2*k}, 16, v{20+k}")
        a(f"v_and_b32 v{S+1+2*k}, 0xffff0000, v{20+k}")
    a(f"v_max3_f32 v12, v{S}, v{S+1}, v{S+2}")
    a(f"v_max3_f32 v14, v{S+3}, v{S+4}, v{S+5}")
    a(f"v_max3_f32 v12, v12, v{S+6}, v{S+7}")
    a("v_max_f32 v12, v12, v14")
    cross_rows_allreduce(a, "v_max_f32", [12], [14])
    a("s_lshl_b32 s40, s32, 4")
    a(f"s_add_u32 s40, s40, {L_MX}")
    a("v_lshl_add_u32 v17, v9, 2, s40")
    a("ds_write_b32 v17, v12")
    a(f"v_lshlrev_b32 v18, 2, v9"); a(f"v_add_u32 v18, {L_MX}, v18")
    csync(a, F_S2, "s2")
    for k in range(8):
        a(f"ds_read_b32 v{20+k}, v18 offset:{16*k}")
    a(f"s_mov_b32 s39, {LOG2E}")
    a("s_waitcnt lgkmcnt(0)")
    a("v_max3_f32 v12, v20, v21, v22")
    a("v_max3_f32 v14, v23, v24, v25")
    a("v_max3_f32 v12, v12, v26, v27")
    a("v_max_f32 v19, v12, v14")
    for k in range(8):
        a(f"v_sub_f32 v{S+k}, v{S+k}, v19")
    for k in range(8):
        a(f"v_mul_f32 v{S+k}, s39, v{S+k}")
    for k in range(8):
        a(f"v_exp_f32 v{S+k}, v{S+k}")
    for k in range(4):
        a(f"v_cvt_pk_bf16_f32 v{20+k}, v{S+2*k}, v{S+1+2*k}")
    a("v_lshlrev_b32 v15, 6, v2"); a("v_lshl_add_u32 v15, v9, 4, v15")
    a(f"v_add_u32 v15, {L_PL}, v15")
    a("s_lshl_b32 s40, s32, 8")
    a("v_add_u32 v14, s40, v15")
    a("ds_write_b128 v14, v[20:23]")
    a(f"v_add_f32 v12, v{S}, v{S+1}"); a(f"v_add_f32 v14, v{S+2}, v{S+3}"); a(f"v_add_f32 v24, v{S+4}, v{S+5}"); a(f"v_add_f32 v25, v{S+6}, v{S+7}")
    a("v_add_f32 v12, v12, v14"); a("v_add_f32 v24, v24, v25"); a("v_add_f32 v12, v12, v24")
    cross_rows_allreduce(a, "v_add_f32", [12], [14])
    a(f"ds_write_b32 v17, v12 offset:{L_LS - L_MX}")
    a("v_lshl_add_u32 v12, v2, 2, v13")
    a("v_and_b32 v14, 7, v12"); a("v_lshlrev_b32 v14, 1, v14")
    a("v_lshrrev_b32 v16, 1, v9")
    a("s_lshl_b32 s40, s32, 1")
    a("v_add_u32 v16, s40, v16")
    a("v_xor_b32 v14, v14, v16")
    a("v_lshlrev_b32 v16, 8, v12")
    a("v_lshl_add_u32 v16, v14, 4, v16")
    a("v_and_b32 v14, 1, v3")
    a("v_lshl_add_u32 v16, v14, 3, v16")
    a(f"v_add_u32 v16, {L_V}, v16")
    csync(a, F_S3, "s3")
    a.stamp(8)
    for ks in range(8):
        a(f"ds_read_b128 v[{64+4*ks}:{67+4*ks}], v15 offset:{256*ks}")
    a("s_cmp_lg_u32 s32, 2")
    a("s_cbranch_scc1 L_noml")
    for k in range(8):
        a(f"ds_read_b32 v{20+k}, v18 offset:{L_LS - L_MX + 16*k}")
    a("s_lshl_b32 s41, s28, 13"); a("s_lshl_b32 s42, s29, 3"); a("s_add_u32 s41, s41, s42")
    a(f"s_add_u32 s41, s41, {WS_SM + SM_ML}")
    a("v_lshl_add_u32 v14, v9, 8, s41")
    a("s_waitcnt lgkmcnt(0)")
    a("v_add_f32 v20, v20, v21"); a("v_add_f32 v22, v22, v23"); a("v_add_f32 v24, v24, v25"); a("v_add_f32 v26, v26, v27")
    a("v_add_f32 v20, v20, v22"); a("v_add_f32 v24, v24, v26"); a("v_add_f32 v21, v20, v24")
    a("v_min_u32 v20, -2, v19"); a("v_min_u32 v21, -2, v21")
    a("s_mov_b64 exec, 15")
    store_local(a, "global_store_dwordx2 v14, v[20:21], s[26:27]")
    a("s_mov_b64 exec, -1")
    a.label("L_noml")
    a("s_cmp_lg_u32 s32, 7")
    a("s_cbranch_scc1 L_cert_ok")
    a("s_bitcmp1_b32 s29, 2")
    a("s_cbranch_scc1 L_cert_ok")
    a("s_lshl_b32 s39, s28, 7"); a(f"s_add_u32 s39, s39, {WS_CERT}")
    a("s_add_u32 s14, s26, s39"); a("s_addc_u32 s15, s27, 0")
    a(f"s_mov_b32 s3, {POLL_MAX}")
    a.label("L_certpoll")
    a("s_load_dwordx8 s[44:51], s[14:15], 0 glc")
    a("s_waitcnt lgkmcnt(0)")
    a("s_xor_b32 s39, s44, s33")
    for k in range(1, 8):
        a(f"s_xor_b32 s{44+k}, s{44+k}, s33")
        a(f"s_or_b32 s39, s39, s{44+k}")
    a("s_cmp_lt_u32 s39, 16")
    a("s_cbranch_scc1 L_cert_ok")
    a("s_sleep 8")
    a("s_sub_u32 s3, s3, 1")
    a("s_cbranch_scc0 L_certpoll")
    a.label("L_cert_ok")
    a("s_lshl_b32 s41, s28, 15"); a("s_lshl_b32 s42, s29, 8"); a("s_add_u32 s41, s41, s42")
    a("s_lshl_b32 s42, s32, 5"); a("s_add_u32 s41, s41, s42")
    a(f"s_add_u32 s41, s41, {WS_O}")
    a("v_lshlrev_b32 v17, 13, v9")
    a("v_lshl_add_u32 v17, v2, 3, v17")
    a("v_add_u32 v17, s41, v17")
    a.stamp(9)
    wait_flag(a, F_V1, 1, "v1")
    a.stamp(10)
    for ks in range(6):
        for hf in range(2):
            r = 32 + 4 * ks + 2 * hf
            a(f"ds_read_b64_tr_b16 v[{r}:{r+1}], v16 offset:{8192*ks + 4096*hf}")
    a("s_bitcmp1_b32 s29, 2")
    a("s_cbranch_scc1 L_nowo")
    a("s_lshr_b32 s42, s31, 2"); a("s_lshl_b32 s39, s42, 7")
    a("s_lshl_b32 s40, s28, 9"); a("s_add_u32 s39, s39, s40")
    a("s_lshr_b32 s40, s32, 1"); a("s_lshl_b32 s40, s40, 5"); a("s_add_u32 s39, s39, s40")
    a("s_lshl_b32 s39, s39, 10")
    a("s_and_b32 s40, s31, 3"); a("s_lshl_b32 s40, s40, 8"); a("s_add_u32 s39, s39, s40")
    a("s_and_b32 s40, s32, 1"); a("s_lshl_b32 s40, s40, 7"); a("s_add_u32 s39, s39, s40")
    a("s_add_u32 s39, s39, 4096")
    a("s_add_u32 s12, s12, s39"); a("s_addc_u32 s13, s13, 0")
    a("v_lshlrev_b32 v12, 13, v2")
    a("v_lshl_add_u32 v12, v3, 3, v12")
    for j in range(8):
        a(f"global_load_dwordx2 v[{96+2*j}:{97+2*j}], v12, s[12:13] offset:{1024*j - 4096}{NT}")
    a("s_lshl_b32 s41, s28, 15"); a("s_lshl_b32 s43, s42, 13"); a("s_add_u32 s41, s41, s43")
    a("s_lshr_b32 s43, s32, 1"); a("s_lshl_b32 s43, s43, 6"); a("s_add_u32 s41, s41, s43")
    a(f"s_add_u32 s41, s41, {WS_O}")
    a("v_lshlrev_b32 v14, 11, v13")
    a("v_lshl_add_u32 v14, v9, 8, v14")
    a("v_lshl_add_u32 v14, v2, 4, v14")
    a("v_add_u32 v14, s41, v14")
    a("s_lshl_b32 s41, s28, 13"); a("s_lshl_b32 s43, s42, 8"); a("s_add_u32 s41, s41, s43")
    a(f"s_add_u32 s41, s41, {WS_SM + SM_ML}")
    a("v_and_b32 v15, 7, v3"); a("v_lshlrev_b32 v15, 3, v15")
    a("v_lshl_add_u32 v15, v2, 6, v15")
    a("v_add_u32 v15, s41, v15")
    a("global_load_dword v112, v14, s[26:27] sc1")
    a("global_load_dword v113, v14, s[26:27] offset:1024 sc1")
    a.label("L_nowo")
    for ks in range(6):
        a(f"s_waitcnt lgkmcnt({10 - 2*ks})")
        c = "0" if ks == 0 else "v[20:23]"
        a(f"v_mfma_f32_16x16x32_bf16 v[20:23], v[{32+4*ks}:{35+4*ks}], v[{64+4*ks}:{67+4*ks}], {c}")
    a("s_mov_b32 s39, 0x05040100")
    a("s_mov_b32 s40, 0x07060302")
    a("s_mov_b32 s44, 0x000f000f")
    a("s_mov_b32 s45, 0x000f000f")
    a.stamp(11)
    a("s_barrier")
    for ks in range(6, 8):
        for hf in range(2):
            r = 32 + 4 * ks + 2 * hf
            a(f"ds_read_b64_tr_b16 v[{r}:{r+1}], v16 offset:{8192*ks + 4096*hf}")
    for ks in range(6, 8):
        a(f"s_waitcnt lgkmcnt({14 - 2*ks})")
        a(f"v_mfma_f32_16x16x32_bf16 v[20:23], v[{32+4*ks}:{35+4*ks}], v[{64+4*ks}:{67+4*ks}], v[20:23]")
    a("v_cvt_pk_bf16_f32 v24, v20, v21")
    a("v_cvt_pk_bf16_f32 v25, v22, v23")
    a("v_min_u32 v24, -2, v24"); a("v_min_u32 v25, -2, v25")
    a("s_mov_b64 exec, s[44:45]")
    store_local(a, "global_store_dwordx2 v17, v[24:25], s[26:27]")
    a("s_mov_b64 exec, -1")
    a.stamp(12)
    a("s_bitcmp1_b32 s29, 2")
    a("s_cbranch_scc1 L_not_o")
    poll(a, ["global_load_dwordx2 v[20:21], v15, s[26:27] sc1"], [20, 21], 12, "ml")
    a.stamp(13)
    W = 112
    for p in range(4):
        for e in range(4):
            sel = "s40" if e & 1 else "s39"
            a(f"v_perm_b32 v{W+4*e+p}, v{96+2*(2*p+1)+(e>>1)}, v{96+2*(2*p)+(e>>1)}, {sel}") if not (stamps and W+4*e+p == 127) else a(f"v_perm_b32 v{W+4*e+p}, v{96+2*(2*p+1)+(e>>1)}, v{96+2*(2*p)+(e>>1)}, {sel}")
    a(f"s_mov_b32 s41, {LOG2E}")
    a("v_mov_b32 v22, v20")
    for ctrl in ("quad_perm:[1,0,3,2]", "quad_perm:[2,3,0,1]", "row_half_mirror"):
        a(dpp("v_max_f32", 22, 22, 22, ctrl))
    a("v_sub_f32 v20, v20, v22")
    a("v_mul_f32 v20, s41, v20")
    a("v_exp_f32 v20, v20")
    a("v_mul_f32 v21, v21, v20")
    for ctrl in ("quad_perm:[1,0,3,2]", "quad_perm:[2,3,0,1]", "row_half_mirror"):
        a(dpp("v_add_f32", 21, 21, 21, ctrl))
    a("v_rcp_f32 v21, v21")
    a("v_mul_f32 v20, v20, v21")
    for s_ in range(8):
        a(f"v_mov_b32_dpp v{24+s_}, v20 row_newbcast:{s_} row_mask:0xf bank_mask:0xf")
    a("s_lshl_b32 s41, s32, 10")
    a(f"s_add_u32 s41, s41, {L_RED}")
    a("v_add_u32 v18, s41, v5")
    a("s_and_b32 s41, s31, 3"); a("s_lshl_b32 s41, s41, 16"); a("s_lshl_b32 s43, s32, 15"); a("s_add_u32 s41, s41, s43")
    a("s_lshl_b32 s43, s28, 9"); a("s_add_u32 s41, s41, s43"); a("s_lshl_b32 s43, s42, 7"); a("s_add_u32 s41, s41, s43")
    a(f"s_add_u32 s41, s41, {WS_P2}")
    a("v_lshrrev_b32 v15, 3, v3"); a("v_lshlrev_b32 v15, 14, v15")
    a("v_lshl_add_u32 v15, v2, 12, v15")
    a("v_and_b32 v16, 7, v3"); a("v_lshl_add_u32 v15, v16, 4, v15")
    a("v_add_u32 v15, s41, v15")
    a.stamp(14)
    poll(a, ["global_load_dwordx4 v[32:35], v14, s[26:27] sc1",
             "global_load_dwordx4 v[36:39], v14, s[26:27] offset:1024 sc1"],
         [32, 33, 34, 35, 36, 37, 38, 39], 12, "h1")
    a.stamp(15)
    for sh in range(2):
        for e in range(4):
            d = 64 + 16 * sh + 4 * e
            a(f"v_mfma_f32_16x16x32_bf16 v[{d}:{d+3}], v[{32+4*sh}:{35+4*sh}], v[{W+4*e}:{W+3+4*e}], 0")
    for e in range(4):
        d0 = 64 + 4 * e
        a(f"v_pk_mul_f32 v[{40+2*e}:{41+2*e}], v[{d0}:{d0+1}], v[24:25]")
        a(f"v_pk_fma_f32 v[{40+2*e}:{41+2*e}], v[{d0+2}:{d0+3}], v[26:27], v[{40+2*e}:{41+2*e}]")
    for e in range(4):
        d1 = 80 + 4 * e
        a(f"v_pk_fma_f32 v[{40+2*e}:{41+2*e}], v[{d1}:{d1+1}], v[28:29], v[{40+2*e}:{41+2*e}]")
        a(f"v_pk_fma_f32 v[{40+2*e}:{41+2*e}], v[{d1+2}:{d1+3}], v[30:31], v[{40+2*e}:{41+2*e}]")
    for e in range(4):
        a(f"v_add_f32 v{48+e}, v{40+2*e}, v{41+2*e}")
    a("ds_write_b128 v18, v[48:51]")
    a("s_waitcnt lgkmcnt(0)")
    a("s_barrier")
    a("s_cmp_ge_u32 s32, 2")
    a("s_cbranch_scc1 L_p2_done")
    for k in range(4):
        a(f"ds_read_b128 v[{32+4*k}:{35+4*k}], v18 offset:{2048*k}")
    a("s_waitcnt lgkmcnt(0)")
    for (d, s_) in ((32, 36), (40, 44), (32, 40)):
        a(f"v_pk_add_f32 v[{d}:{d+1}], v[{d}:{d+1}], v[{s_}:{s_+1}]")
        a(f"v_pk_add_f32 v[{d+2}:{d+3}], v[{d+2}:{d+3}], v[{s_+2}:{s_+3}]")
    for k in range(4):
        a(f"v_min_u32 v{32+k}, -2, v{32+k}")
    a("global_store_dwordx4 v15, v[32:35], s[26:27] sc1")
    a.label("L_p2_done")
    a.stamp(16)
    a("s_cmp_eq_u32 s32, 7")
    a("s_cbranch_scc1 L_dw_done")
    a("s_mul_i32 s41, s28, 224"); a("s_lshl_b32 s43, s32, 5"); a("s_add_u32 s41, s41, s43"); a("s_lshl_b32 s41, s41, 10")
    a("s_lshl_b32 s43, s31, 6"); a("s_add_u32 s41, s41, s43")
    a("s_add_u32 s20, s20, s41"); a("s_addc_u32 s21, s21, 0")
    a("v_lshrrev_b32 v14, 2, v1"); a("v_lshlrev_b32 v14, 10, v14")
    a("v_and_b32 v15, 3, v1"); a("v_lshl_add_u32 v14, v15, 4, v14")
    a("v_add_u32 v15, 0x4000, v14")
    a("s_lshl_b32 s41, s32, 11")
    a(f"s_add_u32 m0, s41, {L_DW}")
    a(f"global_load_lds_dwordx4 v14, s[20:21]{NT}")
    a(f"s_add_u32 m0, s41, {L_DW + 1024}")
    a(f"global_load_lds_dwordx4 v15, s[20:21]{NT}")
    a.label("L_dw_done")
    a("s_cmp_ge_u32 s32, 4")
    a("s_cbranch_scc1 L_h2_done")
    a("s_lshl_b32 s41, s31, 14"); a("s_lshl_b32 s43, s32, 12"); a("s_add_u32 s41, s41, s43")
    a(f"s_add_u32 s41, s41, {WS_P2}")
    a("v_add_u32 v14, s41, v5")
    a("s_lshl_b32 s41, s32, 10"); a("s_lshl_b32 s43, s31, 6"); a("s_add_u32 s41, s41, s43")
    a("v_and_b32 v15, 7, v1")
    a("v_lshl_add_u32 v16, v15, 3, s41")
    a(f"v_add_u32 v17, {L_XR}, v16")
    a("ds_read_b64 v[22:23], v17")
    a("s_lshl_b32 s43, s28, 13"); a(f"s_add_u32 s43, s43, {WS_SM + SM_H}")
    a("v_add_u32 v16, s43, v16")
    a("s_lshl_b32 s43, s32, 2"); a(f"s_add_u32 s43, s43, {L_HL}")
    a("v_lshl_add_u32 v17, v15, 6, s43")
    a("s_waitcnt lgkmcnt(0)")
    a("v_lshlrev_b32 v24, 16, v22"); a("v_and_b32 v25, 0xffff0000, v22")
    a("v_lshlrev_b32 v26, 16, v23"); a("v_and_b32 v27, 0xffff0000, v23")
    poll(a, [f"global_load_dwordx4 v[{32+4*u}:{35+4*u}], v14, s[26:27] offset:{1024*u} sc1" for u in range(4)],
         list(range(32, 48)), 12, "h2")
    a.stamp(17)
    for (d, s_) in ((32, 36), (40, 44), (32, 40)):
        a(f"v_pk_add_f32 v[{d}:{d+1}], v[{d}:{d+1}], v[{s_}:{s_+1}]")
        a(f"v_pk_add_f32 v[{d+2}:{d+3}], v[{d+2}:{d+3}], v[{s_+2}:{s_+3}]")
    for k in range(4):
        a(dpp("v_add_f32", 32+k, 32+k, 32+k, "row_ror:8"))
    cross_rows_allreduce(a, "v_add_f32", [32, 33, 34, 35], [36, 37, 38, 39])
    a("v_cvt_pk_bf16_f32 v36, v32, v33"); a("v_cvt_pk_bf16_f32 v37, v34, v35")
    a("v_lshlrev_b32 v32, 16, v36"); a("v_and_b32 v33, 0xffff0000, v36")
    a("v_lshlrev_b32 v34, 16, v37"); a("v_and_b32 v35, 0xffff0000, v37")
    for k in range(4):
        a(f"v_add_f32 v{32+k}, v{32+k}, v{24+k}")
    a("v_cvt_pk_bf16_f32 v36, v32, v33"); a("v_cvt_pk_bf16_f32 v37, v34, v35")
    a("v_min_u32 v36, -2, v36"); a("v_min_u32 v37, -2, v37")
    a("s_mov_b64 exec, 0xff")
    store_local(a, "global_store_dwordx2 v16, v[36:37], s[26:27]")
    a("v_lshlrev_b32 v32, 16, v36"); a("v_and_b32 v33, 0xffff0000, v36")
    a("v_lshlrev_b32 v34, 16, v37"); a("v_and_b32 v35, 0xffff0000, v37")
    for k in range(4):
        a(f"ds_write_b32 v17, v{32+k} offset:{16*k}")
    a("s_mov_b64 exec, -1")
    a.label("L_h2_done")
    a.stamp(18)
    a("s_cmp_eq_u32 s32, 7")
    a("s_cbranch_scc1 L_dn_done")
    a("v_lshlrev_b32 v14, 9, v2")
    a("v_lshl_add_u32 v14, v13, 6, v14")
    a("v_lshl_add_u32 v14, v9, 3, v14")
    a("s_lshl_b32 s41, s32, 11"); a(f"s_add_u32 s41, s41, {L_DW}")
    a("v_add_u32 v14, s41, v14")
    a("s_lshl_b32 s41, s28, 13"); a("s_lshl_b32 s43, s32, 6"); a("s_add_u32 s41, s41, s43")
    a(f"s_add_u32 s41, s41, {WS_SM + SM_HH}")
    a("v_lshlrev_b32 v15, 9, v9")
    a("v_lshl_add_u32 v15, v2, 4, v15")
    a("v_add_u32 v15, s41, v15")
    a("s_waitcnt vmcnt(0)")
    for nu in range(2):
        for hf in range(2):
            a(f"ds_read_b64_tr_b16 v[{40+4*nu+2*hf}:{41+4*nu+2*hf}], v14 offset:{256*hf + 32*nu}")
    a("s_lshl_b32 s41, s32, 9"); a(f"s_add_u32 s41, s41, {L_RED + 0x2000}")
    a("v_lshl_add_u32 v16, v3, 4, s41")
    poll(a, ["global_load_dwordx4 v[32:35], v15, s[26:27] sc1"], [32, 33, 34, 35], 12, "h4")
    a.stamp(19)
    a("s_waitcnt lgkmcnt(0)")
    a("v_mfma_f32_16x16x32_bf16 v[48:51], v[32:35], v[40:43], 0")
    a("v_mfma_f32_16x16x32_bf16 v[52:55], v[32:35], v[44:47], 0")
    a("s_mov_b64 exec, 0xffff")
    a("ds_write_b128 v16, v[48:51]")
    a("ds_write_b128 v16, v[52:55] offset:256")
    a("s_mov_b64 exec, -1")
    a.label("L_dn_done")
    a("s_waitcnt lgkmcnt(0)")
    a("s_barrier")
    a("s_cmp_lg_u32 s32, 0")
    a("s_cbranch_scc1 L_fin")
    a("v_and_b32 v14, 31, v1"); a("v_lshlrev_b32 v14, 4, v14")
    a(f"v_add_u32 v16, {HI}, v14")
    for k in range(7):
        a(f"ds_read_b128 v[{32+4*k}:{35+4*k}], v16 offset:{L_RED - HI + 0x2000 + 512*k}")
    a(f"ds_read_b128 v[24:27], v16 offset:{L_HL - HI}")
    a("s_lshl_b32 s41, s31, 12"); a(f"s_add_u32 s41, s41, {WS_P5}")
    a("s_lshl_b32 s43, s28, 9"); a("s_add_u32 s43, s43, s41")
    a("v_add_u32 v15, s43, v14")
    a("s_waitcnt lgkmcnt(0)")
    for (d, s_) in ((32, 36), (40, 44), (48, 52), (32, 40), (48, 56), (32, 48)):
        a(f"v_pk_add_f32 v[{d}:{d+1}], v[{d}:{d+1}], v[{s_}:{s_+1}]")
        a(f"v_pk_add_f32 v[{d+2}:{d+3}], v[{d+2}:{d+3}], v[{s_+2}:{s_+3}]")
    for k in range(4):
        a(f"v_min_u32 v{32+k}, -2, v{32+k}")
    a("s_mov_b32 exec_hi, 0")
    a("global_store_dwordx4 v15, v[32:35], s[26:27] sc1")
    a("s_mov_b32 exec_hi, -1")
    a.stamp(20)
    a("s_and_b32 s43, s31, 7")
    a("s_cmp_lg_u32 s43, s28")
    a("s_cbranch_scc1 L_fin")
    a("v_add_u32 v15, s41, v5")
    poll(a, [f"global_load_dwordx4 v[{32+4*u}:{35+4*u}], v15, s[26:27] offset:{1024*u} sc1" for u in range(4)],
         list(range(32, 48)), 12, "h5")
    a.stamp(21)
    for (d, s_) in ((32, 36), (40, 44), (32, 40)):
        a(f"v_pk_add_f32 v[{d}:{d+1}], v[{d}:{d+1}], v[{s_}:{s_+1}]")
        a(f"v_pk_add_f32 v[{d+2}:{d+3}], v[{d+2}:{d+3}], v[{s_+2}:{s_+3}]")
    for k in range(4): a(f"v_mov_b32 v{36+k}, v{32+k}")
    for k in range(4): a(f"v_permlane32_swap_b32 v{32+k}, v{36+k}")
    for k in range(4): a(f"v_add_f32 v{32+k}, v{32+k}, v{36+k}")
    for k in range(4): round_bf16(a, 32 + k)
    for k in range(4): a(f"v_add_f32 v{32+k}, v{32+k}, v{24+k}")
    for k in range(4): a(f"v_mov_b32_dpp v{36+k}, v{32+k} quad_perm:[1,1,3,3] row_mask:0xf bank_mask:0xf")
    for k in range(4): a(f"v_cvt_pk_bf16_f32 v{32+k}, v{32+k}, v{36+k}")
    a("s_lshl_b32 s43, s31, 6")
    a("v_lshl_add_u32 v15, v1, 1, s43")
    a("s_mov_b32 exec_lo, 0x55555555")
    a("s_mov_b32 exec_hi, 0")
    for k in range(4):
        a(f"global_store_dword v15, v{32+k}, s[22:23] offset:{1024*k}")
    a("s_mov_b64 exec, -1")
    a("s_cmp_lg_u32 s2, 0")
    a("s_cbranch_scc1 L_fin")
    a("s_add_u32 s43, s34, 1")
    a("v_mov_b32 v14, 0"); a("v_mov_b32 v15, s43")
    a("s_mov_b64 exec, 1")
    a("global_store_dword v14, v15, s[26:27]")
    a("s_mov_b64 exec, -1")
    a("s_branch L_fin")
    a.label("L_not_o")
    a("s_cmp_ge_u32 s31, 7")
    a("s_cbranch_scc1 L_fin")
    a("s_mul_i32 s41, s32, 229376")
    a("s_mul_i32 s42, s28, 448"); a("s_add_u32 s41, s41, s42")
    a("s_mov_b32 s42, s31"); a("s_lshl_b32 s43, s42, 6"); a("s_add_u32 s41, s41, s43")
    a("s_add_u32 s16, s16, s41"); a("s_addc_u32 s17, s17, 0")
    a("s_add_u32 s18, s18, s41"); a("s_addc_u32 s19, s19, 0")
    a("v_lshrrev_b32 v14, 2, v1"); a("v_mul_u32_u24 v14, 3584, v14")
    a("v_and_b32 v15, 3, v1"); a("v_lshl_add_u32 v14, v15, 4, v14")
    a("s_lshl_b32 s41, s32, 13"); a(f"s_add_u32 s41, s41, {L_GW}")
    for u in range(4):
        if u: a(f"v_add_u32 v14, {16*3584}, v14")
        a(f"s_add_u32 m0, s41, {1024*u}")
        a(f"global_load_lds_dwordx4 v14, s[16:17]{NT}")
        a(f"s_add_u32 m0, s41, {4096 + 1024*u}")
        a(f"global_load_lds_dwordx4 v14, s[18:19]{NT}")
    a("v_lshlrev_b32 v14, 9, v2")
    a("v_lshl_add_u32 v14, v13, 6, v14")
    a("v_and_b32 v15, 1, v3"); a("v_lshl_add_u32 v14, v15, 3, v14")
    a("v_and_b32 v15, 2, v3"); a("v_lshl_add_u32 v14, v15, 11, v14")
    a("v_add_u32 v14, s41, v14")
    a("s_lshl_b32 s41, s32, 7")
    a("v_add_u32 v11, s41, v11")
    a("s_waitcnt vmcnt(0)")
    a.stamp(13)
    for tp in range(2):
        for tau in range(4):
            for hf in range(2):
                r = 64 + 16 * tp + 4 * tau + 2 * hf
                a(f"ds_read_b64_tr_b16 v[{r}:{r+1}], v14 offset:{2048*tp + 256*hf + 16*tau}")
    a("s_cmp_ge_u32 s32, 4")
    a("s_cbranch_scc1 L_ln2_done")
    a("s_lshl_b32 s41, s28, 13"); a("s_lshl_b32 s43, s32, 10"); a("s_add_u32 s41, s41, s43")
    a(f"s_add_u32 s41, s41, {WS_SM + SM_H}")
    a("v_add_u32 v15, s41, v5")
    a(f"s_mul_i32 s41, s32, {XN_STRIDE}"); a(f"s_add_u32 s41, s41, {L_XN}")
    a("v_add_u32 v10, s41, v5")
    poll(a, ["global_load_dwordx4 v[16:19], v15, s[26:27] sc1"], [16, 17, 18, 19], 12, "h3")
    a.stamp(14)
    layernorm_row(a, 16, 20, 28, 32)
    a("ds_write_b128 v10, v[32:35]")
    a.label("L_ln2_done")
    a("s_waitcnt lgkmcnt(0)")
    a("s_barrier")
    a.stamp(15)
    a("ds_read_b128 v[32:35], v11")
    a("ds_read_b128 v[36:39], v11 offset:64")
    a("s_lshl_b32 s41, s32, 10"); a(f"s_add_u32 s41, s41, {L_RED}")
    a("v_lshl_add_u32 v15, v3, 4, s41")
    a("s_waitcnt lgkmcnt(0)")
    for tp in range(2):
        for tau in range(4):
            c = "0" if tp == 0 else f"v[{40+4*tau}:{43+4*tau}]"
            r = 64 + 16 * tp + 4 * tau
            a(f"v_mfma_f32_16x16x32_bf16 v[{40+4*tau}:{43+4*tau}], v[{32+4*tp}:{35+4*tp}], v[{r}:{r+3}], {c}")
    a("s_mov_b64 exec, 0xffff")
    for tau in range(4):
        a(f"ds_write_b128 v15, v[{40+4*tau}:{43+4*tau}] offset:{256*tau}")
    a("s_mov_b64 exec, -1")
    a("s_waitcnt lgkmcnt(0)")
    a("s_barrier")
    a.stamp(16)
    a("s_cmp_ge_u32 s32, 4")
    a("s_cbranch_scc1 L_fin")
    a("s_lshl_b32 s41, s32, 2"); a(f"s_add_u32 s41, s41, {L_RED}")
    a("v_add_u32 v15, s41, v5")
    for k in range(8):
        a(f"ds_read_b32 v{32+k}, v15 offset:{1024*k}")
    a("s_lshl_b32 s41, s28, 13"); a("s_lshl_b32 s43, s32, 9"); a("s_add_u32 s41, s41, s43")
    a("s_lshl_b32 s43, s42, 6"); a("s_add_u32 s41, s41, s43")
    a(f"s_add_u32 s41, s41, {WS_SM + SM_HH}")
    a("v_lshlrev_b32 v16, 4, v2"); a("v_lshl_add_u32 v16, v3, 1, v16"); a("v_add_u32 v16, s41, v16")
    a(f"s_mov_b32 s41, {LOG2E | 0x80000000}")
    a("s_waitcnt lgkmcnt(0)")
    a("v_add_f32 v32, v32, v33"); a("v_add_f32 v34, v34, v35"); a("v_add_f32 v36, v36, v37"); a("v_add_f32 v38, v38, v39")
    a("v_add_f32 v32, v32, v34"); a("v_add_f32 v36, v36, v38"); a("v_add_f32 v32, v32, v36")
    round_bf16(a, 32)
    a("v_mov_b32_dpp v33, v32 row_ror:8 row_mask:0xf bank_mask:0xf")
    a("v_mul_f32 v34, s41, v32")
    a("v_exp_f32 v34, v34")
    a("v_add_f32 v34, 1.0, v34")
    a("v_rcp_f32 v34, v34")
    round_bf16(a, 34)
    a("v_mul_f32 v34, v34, v33")
    a("v_mov_b32_dpp v35, v34 quad_perm:[1,1,3,3] row_mask:0xf bank_mask:0xf")
    a("v_cvt_pk_bf16_f32 v34, v34, v35")
    a("v_min_u32 v34, -2, v34")
    a("s_mov_b32 exec_lo, 0x00550055")
    a("s_mov_b32 exec_hi, 0x00550055")
    store_local(a, "global_store_dword v16, v34, s[26:27]")
    a("s_mov_b64 exec, -1")
    a.stamp(17)
    a.label("L_fin")
    if stamps:
        a.stamp(30)
        a("v_lshrrev_b32 v4, 6, v0")
        a("s_lshl_b32 s41, s2, 12")
        a(f"s_add_u32 s41, s41, {WS_ST}")
        a("v_lshl_add_u32 v14, v0, 2, s41")
        a("global_store_dword v14, v255, s[26:27]")
    a.label("L_end")
    if stamps:
        a.lines = [l.replace("v127, -1", "v255, -1").replace("v_writelane_b32 v127, s100", "v_writelane_b32 v255, s100") for l in a.lines]
        a.lines = [l.replace("v255", "v160") for l in a.lines]
    a.lines = hz.fix(a.lines)
    return a

def emit(fname, **kw):
    a = build(**kw)
    nv = 168 if kw.get("stamps") else 128
    txt = kernel_file([(NAME + "_kernel", a, nv, 102, nv)], [(NAME + "_kernel", (256, 1, 1), (576, 1, 1), LDS_BYTES)])
    txt = txt.replace("CODE_KB_MASK", "15")
    txt = txt.replace("    s_endpgm\n", "    s_endpgm\n    .fill 2048, 4, 0xbf810000\n")
    open(fname, "w").write(txt)

if __name__ == "__main__":
    emit("v3.s")
    emit("v3st.s", stamps=True)
```

```python
import sys
from asmlib import *
import hz

WS_CERT = 0x1000
WS_ID = 0x2000
WS_QA = 0x10000
WS_QB = 0xD0000
WS_O  = 0x20000
WS_SM = 0x60000
SM_ML, SM_HH, SM_ST = 0x0, 0x400, 0x1000
WS_P2 = 0x80000
WS_P5 = 0xC0000
WS_C3 = 0xE0000
WS_P3 = 0x200000
WS_ST = 0x400000
L_K, L_V, L_RED, L_XR, L_XN = 0x0, 0x10000, 0x20000, 0x24000, 0x25000
L_WQ = L_V
XN_STRIDE = 1040
L_QL, L_PL, L_MX, L_LS, L_FL, L_HA = 0x26100, 0x26500, 0x26D00, 0x26D80, 0x26E40, 0x26F00
LDS_BYTES = 0x27100
F_WQ, F_K, F_V1, F_Q, F_QL, F_S2, F_S3, F_UF = 0, 4, 8, 12, 16, 20, 24, 28
L_GW = L_K
L_DW = L_K
POLL_MAX = 200000
LOG2E = 0x3fb8aa3b
SCALE = 0x3db504f3
NCW = 8
STV = 167

class K(Asm):
    def __init__(self, stamps=False):
        super().__init__()
        self.stamps = stamps
    def stamp(self, idx):
        if not self.stamps: return
        if self.stamps == "mini" and idx != 30: return
        self("s_memrealtime s[100:101]")
        self("s_waitcnt lgkmcnt(0)")
        self(f"v_writelane_b32 v{STV}, s100, {idx}")

def dpp(op, d, s0, s1, ctrl):
    return f"{op}_dpp v{d}, v{s0}, v{s1} {ctrl} row_mask:0xf bank_mask:0xf"

def row16_allreduce(a, op, regs):
    for ctrl in ("quad_perm:[1,0,3,2]", "quad_perm:[2,3,0,1]", "row_half_mirror", "row_mirror"):
        for r in regs:
            a(dpp(op, r, r, r, ctrl))

def cross_rows_allreduce(a, op, regs, tmps):
    for sw in ("v_permlane16_swap_b32", "v_permlane32_swap_b32"):
        for r, t in zip(regs, tmps): a(f"v_mov_b32 v{t}, v{r}")
        for r, t in zip(regs, tmps): a(f"{sw} v{r}, v{t}")
        for r, t in zip(regs, tmps): a(f"{op} v{r}, v{r}, v{t}")

def rows_reduce_scatter(a, r):
    a(f"v_permlane32_swap_b32 v{r}, v{r+2}")
    a(f"v_permlane32_swap_b32 v{r+1}, v{r+3}")
    a(f"v_add_f32 v{r}, v{r}, v{r+2}")
    a(f"v_add_f32 v{r+1}, v{r+1}, v{r+3}")
    a(f"v_permlane16_swap_b32 v{r}, v{r+1}")
    a(f"v_add_f32 v{r}, v{r}, v{r+1}")

def round_bf16(a, r):
    a(f"v_cvt_pk_bf16_f32 v{r}, v{r}, v{r}")
    a(f"v_and_b32 v{r}, 0xffff0000, v{r}")

def sum4x4(a, r):
    for (d, s_) in ((r, r+4), (r+8, r+12), (r, r+8)):
        a(f"v_pk_add_f32 v[{d}:{d+1}], v[{d}:{d+1}], v[{s_}:{s_+1}]")
        a(f"v_pk_add_f32 v[{d+2}:{d+3}], v[{d+2}:{d+3}], v[{s_+2}:{s_+3}]")

def poll(a, loads, regs, tmp, name):
    lp = a.newlabel("L_poll_" + name); dn = a.newlabel("L_done_" + name)
    a(f"s_mov_b32 s3, {POLL_MAX}")
    a.label(lp)
    for l in loads: a(l)
    a("s_waitcnt vmcnt(0)")
    rs = list(regs)
    if len(rs) == 1:
        a(f"v_cmp_eq_u32 vcc, -1, v{rs[0]}")
    else:
        if len(rs) % 2 == 0:
            a(f"v_max_u32 v{tmp}, v{rs[0]}, v{rs[1]}"); rs = rs[2:]
        else:
            a(f"v_max3_u32 v{tmp}, v{rs[0]}, v{rs[1]}, v{rs[2]}"); rs = rs[3:]
        while rs:
            a(f"v_max3_u32 v{tmp}, v{tmp}, v{rs[0]}, v{rs[1]}"); rs = rs[2:]
        a(f"v_cmp_eq_u32 vcc, -1, v{tmp}")
    a(f"s_cbranch_vccz {dn}")
    a("s_sub_u32 s3, s3, 1")
    a(f"s_cbranch_scc0 {lp}")
    a.label(dn)

def store_local(a, instrs):
    if isinstance(instrs, str): instrs = [instrs]
    l1 = a.newlabel("L_wt"); l2 = a.newlabel("L_st")
    a("s_cmp_lg_u32 s35, 0")
    a(f"s_cbranch_scc1 {l1}")
    for i in instrs: a(i)
    a(f"s_branch {l2}")
    a.label(l1)
    for i in instrs: a(i + " sc1")
    a.label(l2)

def wait_flag(a, off, val, name, sleep=1):
    lp = a.newlabel("L_wf_" + name); dn = a.newlabel("L_wfd_" + name)
    a(f"s_mov_b32 s3, {POLL_MAX*8}")
    a.label(lp)
    a(f"ds_read_b32 v7, v6 offset:{off}")
    a("s_waitcnt lgkmcnt(0)")
    a("v_readfirstlane_b32 s39, v7")
    a(f"s_cmp_ge_u32 s39, {val}")
    a(f"s_cbranch_scc1 {dn}")
    if sleep: a(f"s_sleep {sleep}")
    a("s_sub_u32 s3, s3, 1")
    a(f"s_cbranch_scc0 {lp}")
    a.label(dn)

def signal(a, off):
    a("s_mov_b64 exec, 1")
    a(f"ds_add_u32 v6, v8 offset:{off}")
    a("s_mov_b64 exec, -1")

def csync(a, off, name):
    signal(a, off)
    wait_flag(a, off, NCW, name, sleep=0)

def sexpr(a, dst, terms, const=0, tmp="s40"):
    first = True
    for reg, sh in terms:
        t = dst if first else tmp
        if sh: a(f"s_lshl_b32 {t}, {reg}, {sh}")
        elif first: a(f"s_mov_b32 {t}, {reg}")
        else: t = reg
        if not first: a(f"s_add_u32 {dst}, {dst}, {t}")
        first = False
    if const: a(f"s_add_u32 {dst}, {dst}, {const}")

def tagpoll(a, n, lab, res, sleep):
    a(f"s_mov_b32 s3, {POLL_MAX}")
    a.label(lab)
    if n == 8:
        a("s_load_dwordx8 s[44:51], s[14:15], 0 glc")
    else:
        a("s_load_dwordx16 s[44:59], s[14:15], 0 glc")
        a("s_load_dwordx16 s[60:75], s[14:15], 64 glc")
    a("s_waitcnt lgkmcnt(0)")
    a(f"s_xor_b32 {res}, s44, s33")
    for k in range(1, n):
        a(f"s_xor_b32 s{44+k}, s{44+k}, s33")
        a(f"s_or_b32 {res}, {res}, s{44+k}")
    a(f"s_cmp_lt_u32 {res}, 16")
    a(f"s_cbranch_scc1 {lab}_ok")
    a(f"s_sleep {sleep}")
    a("s_sub_u32 s3, s3, 1")
    a(f"s_cbranch_scc0 {lab}")
    a.label(lab + "_ok")

def build(stamps=False, nt=True, fwq_after=24, fk_after=40, pfwait=True):
    a = K(stamps)
    NT = " nt" if nt else ""
    G, T, B, U, W = "s28", "s29", "s30", "s31", "s32"
    a("s_load_dwordx16 s[4:19], s[0:1], 0")
    a("s_load_dwordx8 s[20:27], s[0:1], 64")
    a("s_cmp_ge_u32 s2, 256")
    a("s_cbranch_scc1 L_end")
    if stamps:
        a(f"v_mov_b32 v{STV}, -1")
        a("s_memrealtime s[100:101]")
    a("v_lshrrev_b32 v4, 6, v0")
    a("v_and_b32 v1, 63, v0")
    a("v_readfirstlane_b32 s32, v4")
    a("s_and_b32 s28, s2, 7")
    a("s_lshr_b32 s29, s2, 3")
    a("s_lshr_b32 s30, s29, 3")
    a("s_and_b32 s31, s29, 3")
    a("s_lshl_b32 s36, s30, 2")
    a("s_add_u32 s31, s31, s36")
    a("v_lshrrev_b32 v2, 4, v1")
    a("v_and_b32 v3, 15, v1")
    a("v_lshlrev_b32 v5, 4, v1")
    a(f"v_mov_b32 v6, {L_FL}")
    a("s_cmp_lg_u32 s32, 0")
    a("s_cbranch_scc1 L_compute")
    a("s_setprio 3")
    sexpr(a, "s39", [(T, 17), (G, 10)])
    a("v_mov_b32 v8, 0")
    a("v_lshl_add_u32 v7, v3, 2, v6")
    a("ds_write_b32 v7, v8")
    a("s_mov_b32 s3, 16")
    a("s_waitcnt lgkmcnt(0)")
    if stamps: a(f"v_writelane_b32 v{STV}, s100, 0")
    a("s_add_u32 s14, s10, s39"); a("s_addc_u32 s15, s11, 0")
    a.label("L_pf_loop")
    a("global_load_dwordx4 v[16:19], v5, s[14:15]")
    a("s_add_u32 s14, s14, 0x2000"); a("s_addc_u32 s15, s15, 0")
    a("s_sub_u32 s3, s3, 1")
    a("s_cmp_lg_u32 s3, 0")
    a("s_cbranch_scc1 L_pf_loop")
    a("s_and_b32 s37, s29, 7")
    sexpr(a, "s36", [(B, 24), (G, 21), ("s37", 16)], 6144*256)
    a("s_add_u32 s6, s6, s36"); a("s_addc_u32 s7, s7, 0")
    a("s_add_u32 s8, s8, s36"); a("s_addc_u32 s9, s9, 0")
    a("v_lshlrev_b32 v7, 8, v2")
    for u in range(4):
        a(f"v_add_u32 v8, {4*u}, v2")
        a(f"v_xor_b32 v8, v8, v3")
        a(f"v_lshl_add_u32 v{10+u}, v8, 4, v7")
    for u in range(2):
        a(f"v_lshl_add_u32 v8, v2, 1, {8*u}")
        a(f"v_xor_b32 v8, v8, v3")
        a(f"v_lshl_add_u32 v{14+u}, v8, 4, v7")
    a("v_mov_b32 v8, 1")
    a("s_bitcmp0_b32 s29, 2")
    a("s_cbranch_scc1 L_no_wq")
    a("v_lshrrev_b32 v9, 2, v1")
    a("v_lshlrev_b32 v9, 13, v9")
    a("v_and_b32 v7, 3, v1")
    a("v_lshl_add_u32 v9, v7, 4, v9")
    sexpr(a, "s37", [(G, 10), (U, 6)])
    a("s_add_u32 s10, s10, s37"); a("s_addc_u32 s11, s11, 0")
    a(f"s_mov_b32 m0, {L_WQ}")
    a("s_mov_b32 s3, 32")
    if pfwait: a("s_waitcnt vmcnt(0)")
    a.stamp(6)
    a.label("L_wq_loop")
    a("global_load_lds_dwordx4 v9, s[10:11]")
    a("s_add_u32 m0, m0, 1024")
    a("s_add_u32 s10, s10, 0x20000"); a("s_addc_u32 s11, s11, 0")
    a("s_sub_u32 s3, s3, 1")
    a("s_cmp_lg_u32 s3, 0")
    a("s_cbranch_scc1 L_wq_loop")
    a.label("L_no_wq")
    def kv_loop(base, regs, n, lab):
        a(f"s_mov_b32 s3, {n}")
        a.label(lab)
        for u in range(4):
            a(f"global_load_lds_dwordx4 v{regs[u % len(regs)]}, s[{base}:{base+1}] offset:{1024*u}{NT}")
        a("s_add_u32 m0, m0, 4096")
        a(f"s_add_u32 s{base}, s{base}, 4096"); a(f"s_addc_u32 s{base+1}, s{base+1}, 0")
        a("s_sub_u32 s3, s3, 1")
        a("s_cmp_lg_u32 s3, 0")
        a(f"s_cbranch_scc1 {lab}")
    a(f"s_mov_b32 m0, {L_K}")
    kv_loop(6, [10, 11, 12, 13], fwq_after // 4, "L_k1")
    a("s_barrier")
    a("s_bitcmp0_b32 s29, 2")
    a("s_cbranch_scc1 L_k_go")
    a(f"s_waitcnt vmcnt({fwq_after})")
    a(f"ds_write_b32 v6, v8 offset:{F_WQ}")
    a.stamp(1)
    wait_flag(a, F_Q, 2, "lq")
    a.label("L_k_go")
    kv_loop(6, [10, 11, 12, 13], 16 - fwq_after // 4, "L_k2")
    kv_loop(8, [14, 15], fk_after // 4, "L_v1")
    a(f"s_waitcnt vmcnt({fk_after})")
    a(f"ds_write_b32 v6, v8 offset:{F_K}")
    a.stamp(2)
    kv_loop(8, [14, 15], 16 - fk_after // 4, "L_v2")
    a.stamp(3)
    a("s_waitcnt vmcnt(16)")
    a(f"ds_write_b32 v6, v8 offset:{F_V1}")
    a.stamp(4)
    a("s_waitcnt vmcnt(0)")
    a.stamp(5)
    a("s_barrier")
    a("s_branch L_fin")
    a.label("L_compute")
    a("s_sub_u32 s32, s32, 1")
    a("v_mov_b32 v8, 1")
    a("v_and_b32 v9, 3, v3")
    a("v_lshrrev_b32 v13, 2, v3")
    a("v_mov_b32 v16, -1"); a("v_mov_b32 v17, -1"); a("v_mov_b32 v18, -1"); a("v_mov_b32 v19, -1")
    a("v_lshlrev_b32 v10, 6, v1")
    a("s_waitcnt lgkmcnt(0)")
    if stamps: a(f"v_writelane_b32 v{STV}, s100, 0")
    a("s_load_dword s34, s[26:27], 0")
    a("s_bitcmp0_b32 s29, 2")
    a("s_cbranch_scc1 L_p_otype")
    a("s_cmp_eq_u32 s32, 2")
    a("s_cbranch_scc1 L_p_pf")
    a("s_cmp_ge_u32 s32, 2")
    a("s_cbranch_scc1 L_p_done")
    for u in range(4):
        a(f"global_load_dwordx4 v[{32+4*u}:{35+4*u}], v10, s[4:5] offset:{16*u}")
    sexpr(a, "s42", [(U, 1), (W, 0)])
    sexpr(a, "s39", [(G, 15), ("s42", 10)], WS_O)
    a("v_add_u32 v11, s39, v5")
    a("global_store_dwordx4 v11, v[16:19], s[26:27] sc1")
    sexpr(a, "s39", [("s42", 13), (G, 9)], WS_P2)
    a("v_and_b32 v11, 31, v1"); a("v_lshlrev_b32 v11, 4, v11")
    a("v_lshrrev_b32 v12, 5, v1"); a("v_lshl_add_u32 v11, v12, 12, v11")
    a("v_add_u32 v11, s39, v11")
    a("global_store_dwordx4 v11, v[16:19], s[26:27] sc1")
    sexpr(a, "s39", [(G, 13), ("s42", 8)], WS_SM)
    sexpr(a, "s41", [(U, 12), (G, 9), (W, 8)], WS_P5)
    a("v_and_b32 v12, 16, v1")
    a("v_cmp_eq_u32 vcc, 0, v12")
    a("v_mov_b32 v11, s39"); a("v_mov_b32 v12, s41")
    a("v_cndmask_b32 v11, v12, v11, vcc")
    a("v_lshl_add_u32 v11, v3, 4, v11")
    a("global_store_dwordx4 v11, v[16:19], s[26:27] sc1")
    a("s_branch L_p_nobar")
    a.label("L_p_pf")
    a("s_getpc_b64 s[14:15]")
    a("s_lshl_b32 s39, s31, 10")
    a("v_add_u32 v11, s39, v5")
    a("global_load_dwordx4 v[32:35], v11, s[14:15]")
    a("s_branch L_p_done")
    a.label("L_p_otype")
    a("s_lshr_b32 s42, s31, 2")
    a("s_lshr_b32 s43, s32, 1")
    sexpr(a, "s39", [(G, 19), ("s42", 17), ("s43", 15)], 4096)
    a("s_and_b32 s41, s31, 3"); a("s_lshl_b32 s41, s41, 8"); a("s_add_u32 s39, s39, s41")
    a("s_and_b32 s41, s32, 1"); a("s_lshl_b32 s41, s41, 7"); a("s_add_u32 s39, s39, s41")
    a("s_add_u32 s12, s12, s39"); a("s_addc_u32 s13, s13, 0")
    a("v_lshlrev_b32 v12, 13, v2")
    a("v_lshl_add_u32 v12, v3, 3, v12")
    a("s_barrier")
    for j in range(8):
        a(f"global_load_dwordx2 v[{96+2*j}:{97+2*j}], v12, s[12:13] offset:{1024*j - 4096}{NT}")
    a("s_branch L_p_nobar")
    a.label("L_p_done")
    a("s_barrier")
    a.label("L_p_nobar")
    a("s_getreg_b32 s35, hwreg(HW_REG_XCC_ID, 0, 4)")
    a("s_waitcnt lgkmcnt(0)")
    a("s_mul_i32 s33, s34, 0x9e3779b1")
    a("s_add_u32 s33, s33, 0x7f4a7c15")
    a("s_and_b32 s33, s33, 0xfffffff0")
    a("s_or_b32 s33, s33, s35")
    a("s_cmp_lg_u32 s32, 3")
    a("s_cbranch_scc1 L_noid")
    sexpr(a, "s39", [(G, 7), (T, 2)], WS_ID)
    a("s_add_u32 s14, s26, s39"); a("s_addc_u32 s15, s27, 0")
    a("s_mov_b32 s40, s33")
    a("s_atomic_swap s40, s[14:15], 0")
    a.label("L_noid")
    a("s_cmp_ge_u32 s32, 2")
    a("s_cbranch_scc1 L_q_done")
    a("s_bitcmp0_b32 s29, 2")
    a("s_cbranch_scc1 L_q_done")
    a(f"v_mul_u32_u24 v11, {XN_STRIDE}, v9")
    a("v_lshl_add_u32 v11, v2, 4, v11")
    a(f"v_add_u32 v11, {L_XN}, v11")
    a(f"v_add_u32 v12, {L_XR}, v10")
    a("s_waitcnt vmcnt(3)")
    a.stamp(1)
    for u in range(4):
        a(f"ds_write_b128 v12, v[{32+4*u}:{35+4*u}] offset:{16*u}")
    F = 64
    for k in range(16):
        a(f"v_lshlrev_b32 v{F+2*k}, 16, v{32+k}")
        a(f"v_and_b32 v{F+2*k+1}, 0xffff0000, v{32+k}")
    a(f"v_pk_add_f32 v[20:21], v[{F}:{F+1}], v[{F+2}:{F+3}]")
    a(f"v_pk_add_f32 v[22:23], v[{F+4}:{F+5}], v[{F+6}:{F+7}]")
    for k in range(4, 16, 2):
        a(f"v_pk_add_f32 v[20:21], v[20:21], v[{F+2*k}:{F+2*k+1}]")
        a(f"v_pk_add_f32 v[22:23], v[22:23], v[{F+2*k+2}:{F+2*k+3}]")
    a("v_pk_add_f32 v[20:21], v[20:21], v[22:23]")
    a("v_add_f32 v20, v20, v21")
    row16_allreduce(a, "v_add_f32", [20])
    a("v_mul_f32 v20, 0xbb000000, v20")
    a("v_mov_b32 v21, v20")
    a("v_mov_b32 v22, 0"); a("v_mov_b32 v23, 0")
    for k in range(16):
        a(f"v_pk_add_f32 v[24:25], v[{F+2*k}:{F+2*k+1}], v[20:21]")
        a(f"v_pk_fma_f32 v[22:23], v[24:25], v[24:25], v[22:23]")
    a("v_add_f32 v22, v22, v23")
    row16_allreduce(a, "v_add_f32", [22])
    a("v_mul_f32 v22, 0x3b000000, v22")
    round_bf16(a, 20); round_bf16(a, 22)
    a("v_mov_b32 v21, v20")
    a("v_add_f32 v22, 0x3727c5ac, v22")
    round_bf16(a, 22)
    a("v_sqrt_f32 v22, v22")
    round_bf16(a, 22)
    a("v_rcp_f32 v22, v22")
    for k in range(16):
        a(f"v_pk_add_f32 v[{F+2*k}:{F+2*k+1}], v[{F+2*k}:{F+2*k+1}], v[20:21]")
    a("v_mov_b32 v23, v22")
    for k in range(16):
        a(f"v_cvt_pk_bf16_f32 v{32+k}, v{F+2*k}, v{F+2*k+1}")
    for k in range(16):
        a(f"v_lshlrev_b32 v{F+2*k}, 16, v{32+k}")
        a(f"v_and_b32 v{F+2*k+1}, 0xffff0000, v{32+k}")
    for k in range(16):
        a(f"v_pk_mul_f32 v[{F+2*k}:{F+2*k+1}], v[{F+2*k}:{F+2*k+1}], v[22:23]")
    for k in range(16):
        a(f"v_cvt_pk_bf16_f32 v{32+k}, v{F+2*k}, v{F+2*k+1}")
    a(f"v_mul_u32_u24 v12, {XN_STRIDE}, v2")
    a("v_lshl_add_u32 v12, v3, 6, v12")
    a(f"v_add_u32 v12, {L_XN}, v12")
    for u in range(4):
        a(f"ds_write_b128 v12, v[{32+4*u}:{35+4*u}] offset:{16*u}")
    for ks in range(16):
        a(f"ds_read_b128 v[{96+4*ks}:{99+4*ks}], v11 offset:{64*ks}")
    a("v_lshlrev_b32 v12, 9, v2")
    a("v_lshl_add_u32 v12, v13, 6, v12")
    a("v_lshl_add_u32 v12, v9, 3, v12")
    sexpr(a, "s39", [(W, 5)], L_WQ)
    a("v_add_u32 v12, s39, v12")
    sexpr(a, "s39", [(G, 13), (U, 7), (W, 6)], WS_QA)
    a("v_lshlrev_b32 v14, 11, v2")
    a("v_lshl_add_u32 v14, v3, 2, v14")
    a("v_add_u32 v14, s39, v14")
    a(f"v_add_u32 v15, {WS_QB - WS_QA}, v14")
    a("v_cmp_eq_u32 s[44:45], 1, v2")
    a("v_cmp_eq_u32 s[46:47], 2, v2")
    a("v_cmp_eq_u32 s[48:49], 3, v2")
    a("v_mov_b32 v25, s33")
    a.stamp(2)
    a("s_barrier")
    wait_flag(a, F_WQ, 1, "wq", sleep=0)
    a.stamp(3)
    for ks in range(16):
        r = 32 + 4 * ks
        a(f"ds_read_b64_tr_b16 v[{r}:{r+1}], v12 offset:{2048*ks}")
        a(f"ds_read_b64_tr_b16 v[{r+2}:{r+3}], v12 offset:{2048*ks + 256}")
        if ks >= 6:
            k2 = ks - 6
            a("s_waitcnt lgkmcnt(12)")
            c = "0" if k2 == 0 else "v[20:23]"
            a(f"v_mfma_f32_16x16x32_bf16 v[20:23], v[{96+4*k2}:{99+4*k2}], v[{32+4*k2}:{35+4*k2}], {c}")
    for k2 in range(10, 16):
        a(f"s_waitcnt lgkmcnt({2*(15-k2)})")
        a(f"v_mfma_f32_16x16x32_bf16 v[20:23], v[{96+4*k2}:{99+4*k2}], v[{32+4*k2}:{35+4*k2}], v[20:23]")
    a("v_cndmask_b32 v20, v20, v21, s[44:45]")
    a("v_cndmask_b32 v20, v20, v22, s[46:47]")
    a("v_cndmask_b32 v20, v20, v23, s[48:49]")
    a("v_mov_b32_dpp v21, v20 quad_perm:[1,1,3,3] row_mask:0xf bank_mask:0xf")
    a("v_cvt_pk_bf16_f32 v24, v20, v21")
    a("s_waitcnt vmcnt(0)")
    a("s_mov_b32 exec_lo, 0x55555555")
    a("s_mov_b32 exec_hi, 0x55555555")
    a("global_store_dwordx2 v14, v[24:25], s[26:27]")
    a("global_store_dwordx2 v15, v[24:25], s[26:27] sc1")
    a("s_mov_b64 exec, -1")
    signal(a, F_Q)
    a.stamp(4)
    a.label("L_q_done")
    a("s_cmp_lg_u32 s32, 7")
    a("s_cbranch_scc1 L_qp_done")
    sexpr(a, "s39", [(G, 7)], WS_ID)
    a("s_add_u32 s14, s26, s39"); a("s_addc_u32 s15, s27, 0")
    a("s_sleep 20")
    tagpoll(a, 32, "L_idpoll", "s35", 8)
    a.stamp(1)
    a("s_cmp_eq_u32 s35, 0")
    a(f"s_cselect_b32 s41, {WS_QA}, {WS_QB}") if False else (a(f"s_mov_b32 s41, {WS_QA}"), a(f"s_mov_b32 s42, {WS_QB}"), a("s_cselect_b32 s41, s41, s42"))
    sexpr(a, "s39", [(G, 13), (B, 11), ("s41", 0)])
    a("v_add_u32 v14, s39, v5")
    a(f"v_lshlrev_b32 v15, 3, v1"); a(f"v_add_u32 v15, {L_QL}, v15")
    D = 4
    QR = [112, 120, 148, 156]
    def qissue(k):
        a(f"global_load_dwordx4 v[{QR[k]}:{QR[k]+3}], v14, s[26:27] sc1")
        a(f"global_load_dwordx4 v[{QR[k]+4}:{QR[k]+7}], v14, s[26:27] offset:1024 sc1")
    for k in range(D - 1):
        qissue(k); a("s_sleep 8")
    a(f"s_mov_b32 s3, {POLL_MAX}")
    a.label("L_qpoll")
    for k in range(D):
        qissue((k + D - 1) % D)
        a(f"s_waitcnt vmcnt({2*(D-1)})")
        r = QR[k]
        a(f"v_xor_b32 v20, s33, v{r+1}"); a(f"v_xor_b32 v21, s33, v{r+3}")
        a(f"v_xor_b32 v22, s33, v{r+5}"); a(f"v_xor_b32 v23, s33, v{r+7}")
        a("v_or3_b32 v20, v20, v21, v22"); a("v_or_b32 v20, v20, v23")
        a(f"v_mov_b32 v24, v{r}"); a(f"v_mov_b32 v25, v{r+2}"); a(f"v_mov_b32 v26, v{r+4}"); a(f"v_mov_b32 v27, v{r+6}")
        a("v_cmp_lt_u32 vcc, 15, v20")
        a("s_cbranch_vccz L_qok")
        a("s_sleep 2")
    a("s_sub_u32 s3, s3, 1")
    a("s_cbranch_scc0 L_qpoll")
    a.label("L_qok")
    a("ds_write_b64 v15, v[24:25]")
    a("ds_write_b64 v15, v[26:27] offset:512")
    a("v_mov_b32 v20, s35")
    a(f"ds_write_b32 v6, v20 offset:{F_UF}")
    signal(a, F_QL)
    a.stamp(5)
    a.label("L_qp_done")
    a("v_lshlrev_b32 v14, 8, v9")
    a("v_lshl_add_u32 v14, v2, 4, v14")
    a(f"v_add_u32 v14, {L_QL}, v14")
    a("s_lshl_b32 s39, s32, 13")
    a("v_lshl_add_u32 v12, v3, 8, s39")
    for t in range(4):
        a(f"v_add_u32 v24, {4*t}, v2")
        a("v_xor_b32 v24, v24, v3")
        a(f"v_lshl_add_u32 v{20+t}, v24, 4, v12")
    sexpr(a, "s40", [(W, 4)], L_MX, tmp="s41")
    a("v_lshl_add_u32 v17, v9, 2, s40")
    a(f"v_lshlrev_b32 v18, 2, v9"); a(f"v_add_u32 v18, {L_MX}, v18")
    a("v_lshlrev_b32 v15, 6, v2"); a("v_lshl_add_u32 v15, v9, 4, v15")
    a(f"v_add_u32 v15, {L_PL}, v15")
    a("s_lshl_b32 s40, s32, 8")
    a("v_add_u32 v11, s40, v15")
    a("v_lshl_add_u32 v12, v2, 2, v13")
    a("v_and_b32 v24, 7, v12"); a("v_lshlrev_b32 v24, 1, v24")
    a("v_lshrrev_b32 v16, 1, v9")
    a("s_lshl_b32 s40, s32, 1")
    a("v_add_u32 v16, s40, v16")
    a("v_xor_b32 v24, v24, v16")
    a("v_lshlrev_b32 v16, 8, v12")
    a("v_lshl_add_u32 v16, v24, 4, v16")
    a("v_and_b32 v24, 1, v3")
    a("v_lshl_add_u32 v16, v24, 3, v16")
    a(f"v_add_u32 v16, {L_V}, v16")
    sexpr(a, "s41", [(G, 15), (T, 8), (W, 5)], WS_O)
    a("v_lshlrev_b32 v10, 13, v9")
    a("v_lshl_add_u32 v10, v2, 3, v10")
    a("v_add_u32 v10, s41, v10")
    wait_flag(a, F_K, 1, "k")
    a.stamp(6)
    for tau in range(2):
        for t in range(4):
            r = 32 + 16 * tau + 4 * t
            a(f"ds_read_b128 v[{r}:{r+3}], v{20+t} offset:{4096*tau}")
    wait_flag(a, F_QL, 1, "ql")
    a.stamp(7)
    for t in range(4):
        a(f"ds_read_b128 v[{64+4*t}:{67+4*t}], v14 offset:{64*t}")
    a(f"ds_read_b32 v7, v6 offset:{F_UF}")
    S = 80
    for t in range(4):
        a(f"s_waitcnt lgkmcnt({4 - t})")
        for tau in range(2):
            r = 32 + 16 * tau + 4 * t
            c = "0" if t == 0 else f"v[{S+4*tau}:{S+3+4*tau}]"
            a(f"v_mfma_f32_16x16x32_bf16 v[{S+4*tau}:{S+3+4*tau}], v[{r}:{r+3}], v[{64+4*t}:{67+4*t}], {c}")
    a("s_waitcnt lgkmcnt(0)")
    a("v_readfirstlane_b32 s35, v7")
    a(f"s_mov_b32 s40, {SCALE}"); a(f"s_mov_b32 s41, {SCALE}")
    for k in range(4):
        a(f"v_cvt_pk_bf16_f32 v{20+k}, v{S+2*k}, v{S+1+2*k}")
    for k in range(4):
        a(f"v_lshlrev_b32 v{S+2*k}, 16, v{20+k}")
        a(f"v_and_b32 v{S+1+2*k}, 0xffff0000, v{20+k}")
    for k in range(4):
        a(f"v_pk_mul_f32 v[{S+2*k}:{S+1+2*k}], v[{S+2*k}:{S+1+2*k}], s[40:41]")
    for k in range(4):
        a(f"v_cvt_pk_bf16_f32 v{20+k}, v{S+2*k}, v{S+1+2*k}")
    for k in range(4):
        a(f"v_lshlrev_b32 v{S+2*k}, 16, v{20+k}")
        a(f"v_and_b32 v{S+1+2*k}, 0xffff0000, v{20+k}")
    a(f"v_max3_f32 v12, v{S}, v{S+1}, v{S+2}")
    a(f"v_max3_f32 v14, v{S+3}, v{S+4}, v{S+5}")
    a(f"v_max3_f32 v12, v12, v{S+6}, v{S+7}")
    a("v_max_f32 v12, v12, v14")
    cross_rows_allreduce(a, "v_max_f32", [12], [14])
    a("ds_write_b32 v17, v12")
    csync(a, F_S2, "s2")
    for k in range(8):
        a(f"ds_read_b32 v{20+k}, v18 offset:{16*k}")
    a(f"s_mov_b32 s39, {LOG2E}")
    a("s_waitcnt lgkmcnt(0)")
    a("v_max3_f32 v12, v20, v21, v22")
    a("v_max3_f32 v14, v23, v24, v25")
    a("v_max3_f32 v12, v12, v26, v27")
    a("v_max_f32 v19, v12, v14")
    for k in range(8):
        a(f"v_sub_f32 v{S+k}, v{S+k}, v19")
    for k in range(8):
        a(f"v_mul_f32 v{S+k}, s39, v{S+k}")
    for k in range(8):
        a(f"v_exp_f32 v{S+k}, v{S+k}")
    for k in range(4):
        a(f"v_cvt_pk_bf16_f32 v{20+k}, v{S+2*k}, v{S+1+2*k}")
    a("ds_write_b128 v11, v[20:23]")
    a(f"v_add_f32 v12, v{S}, v{S+1}"); a(f"v_add_f32 v14, v{S+2}, v{S+3}"); a(f"v_add_f32 v24, v{S+4}, v{S+5}"); a(f"v_add_f32 v25, v{S+6}, v{S+7}")
    a("v_add_f32 v12, v12, v14"); a("v_add_f32 v24, v24, v25"); a("v_add_f32 v12, v12, v24")
    cross_rows_allreduce(a, "v_add_f32", [12], [14])
    a(f"ds_write_b32 v17, v12 offset:{L_LS - L_MX}")
    csync(a, F_S3, "s3")
    a.stamp(8)
    for ks in range(8):
        a(f"ds_read_b128 v[{64+4*ks}:{67+4*ks}], v15 offset:{256*ks}")
    a("s_cmp_lg_u32 s32, 2")
    a("s_cbranch_scc1 L_noml")
    for k in range(8):
        a(f"ds_read_b32 v{20+k}, v18 offset:{L_LS - L_MX + 16*k}")
    sexpr(a, "s41", [(G, 13), (T, 3)], WS_SM + SM_ML)
    a("v_lshl_add_u32 v14, v9, 8, s41")
    a("s_waitcnt lgkmcnt(0)")
    a("v_add_f32 v20, v20, v21"); a("v_add_f32 v22, v22, v23"); a("v_add_f32 v24, v24, v25"); a("v_add_f32 v26, v26, v27")
    a("v_add_f32 v20, v20, v22"); a("v_add_f32 v24, v24, v26"); a("v_add_f32 v21, v20, v24")
    a("v_min_u32 v20, -2, v19"); a("v_min_u32 v21, -2, v21")
    a("s_mov_b64 exec, 15")
    store_local(a, "global_store_dwordx2 v14, v[20:21], s[26:27]")
    a("s_mov_b64 exec, -1")
    a.label("L_noml")
    a("s_cmp_lg_u32 s29, 0")
    a("s_cbranch_scc1 L_nocert")
    sexpr(a, "s39", [(W, 7), (G, 2)], WS_CERT)
    a("s_add_u32 s14, s26, s39"); a("s_addc_u32 s15, s27, 0")
    a("s_mov_b32 s40, s33")
    a("s_atomic_swap s40, s[14:15], 0")
    a.label("L_nocert")
    a("s_mov_b32 s44, 0x000f000f"); a("s_mov_b32 s45, 0x000f000f")
    a("s_bitcmp1_b32 s29, 2")
    a("s_cbranch_scc1 L_prep_q")
    a("s_lshr_b32 s42, s31, 2")
    a("s_lshr_b32 s43, s32, 1")
    sexpr(a, "s41", [(G, 15), ("s42", 13), ("s43", 6)], WS_O)
    a("v_lshlrev_b32 v128, 11, v13")
    a("v_lshl_add_u32 v128, v9, 8, v128")
    a("v_lshl_add_u32 v128, v2, 4, v128")
    a("v_add_u32 v128, s41, v128")
    sexpr(a, "s41", [(G, 13), ("s42", 8)], WS_SM + SM_ML)
    a("v_and_b32 v12, 7, v3"); a("v_lshlrev_b32 v129, 3, v12")
    a("v_lshl_add_u32 v129, v2, 6, v129")
    a("v_add_u32 v129, s41, v129")
    sexpr(a, "s41", [(W, 10)], L_RED)
    a("v_add_u32 v130, s41, v5")
    a("s_and_b32 s46, s31, 3")
    sexpr(a, "s41", [("s46", 16), (W, 15), (G, 9), ("s42", 7)], WS_P2)
    a("v_lshrrev_b32 v131, 3, v3"); a("v_lshlrev_b32 v131, 14, v131")
    a("v_lshl_add_u32 v131, v2, 12, v131")
    a("v_lshl_add_u32 v131, v12, 4, v131")
    a("v_add_u32 v131, s41, v131")
    a("s_mul_i32 s41, s28, 224"); a("s_lshl_b32 s46, s32, 5"); a("s_add_u32 s41, s41, s46")
    a("s_min_u32 s41, s41, 1760")
    sexpr(a, "s41", [("s41", 10), (U, 6)])
    a("s_add_u32 s20, s20, s41"); a("s_addc_u32 s21, s21, 0")
    a("v_lshrrev_b32 v132, 2, v1"); a("v_lshlrev_b32 v132, 10, v132")
    a("v_lshl_add_u32 v132, v9, 4, v132")
    a("v_add_u32 v133, 0x4000, v132")
    a("v_lshlrev_b32 v134, 9, v2")
    a("v_lshl_add_u32 v134, v13, 6, v134")
    a("v_lshl_add_u32 v134, v9, 3, v134")
    sexpr(a, "s47", [(W, 11)], L_DW)
    a("v_add_u32 v134, s47, v134")
    sexpr(a, "s41", [(G, 13), (W, 6)], WS_SM + SM_HH)
    a("v_lshlrev_b32 v135, 9, v9")
    a("v_lshl_add_u32 v135, v2, 4, v135")
    a("v_add_u32 v135, s41, v135")
    sexpr(a, "s41", [(W, 9)], L_RED + 0x2000)
    a("v_lshl_add_u32 v136, v3, 4, s41")
    a("v_and_b32 v12, 31, v1"); a("v_lshlrev_b32 v12, 4, v12")
    a(f"v_add_u32 v137, {L_RED + 0x2000}, v12")
    sexpr(a, "s41", [(U, 12), (G, 9)], WS_P5)
    a("v_add_u32 v138, s41, v12")
    a("s_and_b32 s46, s32, 1")
    sexpr(a, "s48", [(U, 1), ("s46", 0)])
    a("s_min_u32 s48, s48, 27")
    sexpr(a, "s41", [(G, 17), ("s48", 12)], WS_P3)
    a("v_add_u32 v139, s41, v5")
    a("s_lshr_b32 s46, s48, 2"); a("s_and_b32 s49, s48, 3")
    sexpr(a, "s41", [(G, 15), ("s46", 8), ("s49", 2)], WS_C3)
    a("v_lshlrev_b32 v140, 11, v2"); a("v_lshl_add_u32 v140, v3, 4, v140"); a("v_add_u32 v140, s41, v140")
    sexpr(a, "s41", [(G, 13)], WS_SM + SM_ST)
    a("v_lshl_add_u32 v142, v3, 7, s41")
    a("v_mul_u32_u24 v12, 20, v2"); a("v_add_u32 v141, v142, v12")
    a("v_lshl_add_u32 v142, v2, 4, v142")
    sexpr(a, "s41", [(G, 13), ("s48", 4)], WS_SM + SM_HH)
    a("v_lshlrev_b32 v143, 9, v2"); a("v_lshl_add_u32 v143, v3, 1, v143"); a("v_add_u32 v143, s41, v143")
    a("s_mov_b32 s40, 0x05040100"); a("s_mov_b32 s41, 0x07060302")
    a("s_waitcnt vmcnt(1)")
    a("s_cmp_eq_u32 s32, 2"); a("s_cbranch_scc1 L_wo_in")
    a("s_waitcnt vmcnt(0)")
    a.label("L_wo_in")
    WO = 112
    for p in range(4):
        for e in range(4):
            sel = "s41" if e & 1 else "s40"
            a(f"v_perm_b32 v{WO+4*e+p}, v{96+2*(2*p+1)+(e>>1)}, v{96+2*(2*p)+(e>>1)}, {sel}")
    a("global_load_dword v96, v128, s[26:27] sc1")
    a("global_load_dword v97, v128, s[26:27] offset:1024 sc1")
    a("s_branch L_prep_done")
    a.label("L_prep_q")
    a("s_min_u32 s46, s32, 6")
    sexpr(a, "s41", [(G, 17), ("s46", 14), (U, 8)], WS_P3)
    a("v_lshlrev_b32 v128, 12, v2"); a("v_lshl_add_u32 v128, v3, 4, v128"); a("v_add_u32 v128, s41, v128")
    sexpr(a, "s41", [(G, 15), (U, 11), (W, 8)], WS_C3)
    a("v_lshl_add_u32 v129, v3, 4, s41")
    a("v_mov_b32 v24, -1"); a("v_mov_b32 v25, -1"); a("v_mov_b32 v26, -1"); a("v_mov_b32 v27, -1")
    store_local(a, ["global_store_dwordx4 v128, v[24:27], s[26:27]", "global_store_dwordx4 v129, v[24:27], s[26:27]"])
    sexpr(a, "s41", [(G, 13), (U, 7)], WS_SM + SM_ST)
    a("v_lshlrev_b32 v130, 6, v2"); a("v_lshl_add_u32 v130, v3, 4, v130"); a("v_add_u32 v130, s41, v130")
    a("s_mul_i32 s41, s31, 114688")
    a("s_mul_i32 s42, s28, 448"); a("s_add_u32 s41, s41, s42")
    a("s_lshl_b32 s42, s46, 6"); a("s_add_u32 s41, s41, s42")
    a("s_add_u32 s16, s16, s41"); a("s_addc_u32 s17, s17, 0")
    a("s_add_u32 s18, s18, s41"); a("s_addc_u32 s19, s19, 0")
    a("v_lshrrev_b32 v132, 2, v1"); a("v_mul_u32_u24 v132, 3584, v132")
    a("v_lshl_add_u32 v132, v9, 4, v132")
    a(f"v_add_u32 v133, {16*3584}, v132")
    sexpr(a, "s47", [(W, 12)], L_GW)
    a("v_lshlrev_b32 v134, 9, v2")
    a("v_lshl_add_u32 v134, v13, 6, v134")
    a("v_and_b32 v12, 1, v3"); a("v_lshl_add_u32 v134, v12, 3, v134")
    a("v_and_b32 v12, 2, v3"); a("v_lshl_add_u32 v134, v12, 10, v134")
    a("v_add_u32 v134, s47, v134")
    a(f"v_lshlrev_b32 v12, 6, v9"); a("v_lshl_add_u32 v12, v2, 4, v12"); a(f"v_add_u32 v12, {L_HA}, v12")
    a(f"v_mov_b32 v14, {L_HA + 320}")
    for tau in range(4):
        a(f"v_cmp_eq_u32 vcc, {tau}, v13")
        a(f"v_cndmask_b32 v{135+tau}, v14, v12, vcc")
    a(f"v_mov_b32 v12, {L_HA + 256}")
    a("v_cmp_eq_u32 vcc, 4, v3")
    a("v_cndmask_b32 v139, v135, v12, vcc")
    a("v_mov_b32 v24, 0x3f803f80")
    a("v_and_b32 v12, 31, v1")
    a("v_cmp_gt_u32 vcc, 16, v12")
    a("v_cndmask_b32 v24, 0, v24, vcc")
    a("v_lshlrev_b32 v12, 2, v12"); a(f"v_add_u32 v12, {L_HA + 256}, v12")
    a("ds_write_b32 v12, v24")
    a("s_and_b32 s46, s32, 3")
    sexpr(a, "s41", [(U, 14), ("s46", 12)], WS_P2)
    a("v_add_u32 v140, s41, v5")
    a("v_and_b32 v12, 7, v1"); a("v_lshl_add_u32 v12, v12, 2, v2"); a("v_lshlrev_b32 v12, 1, v12")
    sexpr(a, "s41", [("s46", 6)], L_HA)
    a("v_add_u32 v141, s41, v12")
    sexpr(a, "s41", [("s46", 10), (U, 6)], L_XR)
    a("v_add_u32 v12, s41, v12")
    a("ds_read_u16 v142, v12")
    sexpr(a, "s41", [(U, 12)], WS_P5)
    a("v_add_u32 v143, s41, v5")
    a("v_and_b32 v12, 31, v1"); a("v_lshlrev_b32 v12, 1, v12")
    a("v_lshrrev_b32 v14, 5, v1")
    a("v_lshl_add_u32 v144, v14, 11, v12")
    a("s_lshl_b32 s41, s31, 6"); a("v_add_u32 v144, s41, v144")
    a("v_lshl_add_u32 v145, v14, 7, v12"); a(f"v_add_u32 v145, {L_HA}, v145")
    a("s_waitcnt lgkmcnt(0)")
    a("v_lshlrev_b32 v142, 16, v142")
    a("s_cmp_lg_u32 s32, 7")
    a("s_cbranch_scc1 L_prep_done")
    sexpr(a, "s39", [(G, 7)], WS_CERT)
    a("s_add_u32 s14, s26, s39"); a("s_addc_u32 s15, s27, 0")
    tagpoll(a, 8, "L_certpoll", "s39", 8)
    a("s_mov_b32 s44, 0x000f000f"); a("s_mov_b32 s45, 0x000f000f")
    sexpr(a, "s47", [(W, 12)], L_GW)
    a.label("L_prep_done")
    a.stamp(9)
    wait_flag(a, F_V1, 1, "v1")
    a.stamp(10)
    for ks in range(6):
        for hf in range(2):
            r = 32 + 4 * ks + 2 * hf
            a(f"ds_read_b64_tr_b16 v[{r}:{r+1}], v16 offset:{8192*ks + 4096*hf}")
    for ks in range(6):
        a(f"s_waitcnt lgkmcnt({10 - 2*ks})")
        c = "0" if ks == 0 else "v[20:23]"
        a(f"v_mfma_f32_16x16x32_bf16 v[20:23], v[{32+4*ks}:{35+4*ks}], v[{64+4*ks}:{67+4*ks}], {c}")
    a.stamp(11)
    a("s_barrier")
    for ks in range(6, 8):
        for hf in range(2):
            r = 32 + 4 * ks + 2 * hf
            a(f"ds_read_b64_tr_b16 v[{r}:{r+1}], v16 offset:{8192*ks + 4096*hf}")
    for ks in range(6, 8):
        a(f"s_waitcnt lgkmcnt({14 - 2*ks})")
        a(f"v_mfma_f32_16x16x32_bf16 v[20:23], v[{32+4*ks}:{35+4*ks}], v[{64+4*ks}:{67+4*ks}], v[20:23]")
    a("s_waitcnt vmcnt(0)")
    a("v_cvt_pk_bf16_f32 v24, v20, v21")
    a("v_cvt_pk_bf16_f32 v25, v22, v23")
    a("v_min_u32 v24, -2, v24"); a("v_min_u32 v25, -2, v25")
    a("s_mov_b64 exec, s[44:45]")
    store_local(a, "global_store_dwordx2 v10, v[24:25], s[26:27]")
    a("s_mov_b64 exec, -1")
    a.stamp(12)
    a("s_bitcmp1_b32 s29, 2")
    a("s_cbranch_scc1 L_qtail")
    poll(a, ["global_load_dwordx2 v[20:21], v129, s[26:27] sc1"], [20, 21], 12, "ml")
    a(f"s_mov_b32 s41, {LOG2E}")
    a("v_mov_b32 v22, v20")
    for ctrl in ("quad_perm:[1,0,3,2]", "quad_perm:[2,3,0,1]", "row_half_mirror"):
        a(dpp("v_max_f32", 22, 22, 22, ctrl))
    a("v_sub_f32 v20, v20, v22")
    a("v_mul_f32 v20, s41, v20")
    a("v_exp_f32 v20, v20")
    a("v_mul_f32 v21, v21, v20")
    for ctrl in ("quad_perm:[1,0,3,2]", "quad_perm:[2,3,0,1]", "row_half_mirror"):
        a(dpp("v_add_f32", 21, 21, 21, ctrl))
    a("v_rcp_f32 v21, v21")
    a("v_mul_f32 v20, v20, v21")
    for s_ in range(8):
        a(f"v_mov_b32_dpp v{24+s_}, v20 row_newbcast:{s_} row_mask:0xf bank_mask:0xf")
    a.stamp(13)
    poll(a, ["global_load_dwordx4 v[32:35], v128, s[26:27] sc1",
             "global_load_dwordx4 v[36:39], v128, s[26:27] offset:1024 sc1"],
         [32, 33, 34, 35, 36, 37, 38, 39], 12, "h1")
    a.stamp(14)
    for sh in range(2):
        for e in range(4):
            d = 64 + 16 * sh + 4 * e
            a(f"v_mfma_f32_16x16x32_bf16 v[{d}:{d+3}], v[{32+4*sh}:{35+4*sh}], v[{WO+4*e}:{WO+3+4*e}], 0")
    for e in range(4):
        d0 = 64 + 4 * e
        a(f"v_pk_mul_f32 v[{40+2*e}:{41+2*e}], v[{d0}:{d0+1}], v[24:25]")
        a(f"v_pk_fma_f32 v[{40+2*e}:{41+2*e}], v[{d0+2}:{d0+3}], v[26:27], v[{40+2*e}:{41+2*e}]")
    for e in range(4):
        d1 = 80 + 4 * e
        a(f"v_pk_fma_f32 v[{40+2*e}:{41+2*e}], v[{d1}:{d1+1}], v[28:29], v[{40+2*e}:{41+2*e}]")
        a(f"v_pk_fma_f32 v[{40+2*e}:{41+2*e}], v[{d1+2}:{d1+3}], v[30:31], v[{40+2*e}:{41+2*e}]")
    for e in range(4):
        a(f"v_add_f32 v{48+e}, v{40+2*e}, v{41+2*e}")
    a("ds_write_b128 v130, v[48:51]")
    a("s_waitcnt lgkmcnt(0)")
    a("s_barrier")
    a("s_cmp_ge_u32 s32, 2")
    a("s_cbranch_scc1 L_p2_done")
    for k in range(4):
        a(f"ds_read_b128 v[{32+4*k}:{35+4*k}], v130 offset:{2048*k}")
    a("s_waitcnt lgkmcnt(0)")
    sum4x4(a, 32)
    for k in range(4):
        a(f"v_min_u32 v{32+k}, -2, v{32+k}")
    a("global_store_dwordx4 v131, v[32:35], s[26:27] sc1")
    a.label("L_p2_done")
    a.stamp(15)
    a("s_barrier")
    a("s_mov_b32 m0, s47")
    a(f"global_load_lds_dwordx4 v132, s[20:21]{NT}")
    a("s_add_u32 m0, s47, 1024")
    a(f"global_load_lds_dwordx4 v133, s[20:21]{NT}")
    a("s_waitcnt vmcnt(0)")
    for nu in range(2):
        for hf in range(2):
            a(f"ds_read_b64_tr_b16 v[{56+4*nu+2*hf}:{57+4*nu+2*hf}], v134 offset:{256*hf + 32*nu}")
    a.stamp(16)
    a("s_cmp_lt_u32 s32, 6")
    a("s_cbranch_scc1 L_act_done")
    a("s_cmp_ge_u32 s31, 14")
    a("s_cbranch_scc1 L_act_done")
    a("v_add_u32 v14, 0x2000, v140"); a("v_add_u32 v15, 0x4000, v140"); a("v_add_u32 v16, 0x6000, v140")
    poll(a, ["global_load_dword v20, v140, s[26:27] sc1", "global_load_dword v21, v14, s[26:27] sc1",
             "global_load_dword v22, v15, s[26:27] sc1", "global_load_dword v23, v16, s[26:27] sc1"], [20, 21, 22, 23], 12, "c3")
    a("v_add_f32 v20, v20, v21"); a("v_add_f32 v22, v22, v23"); a("v_add_f32 v20, v20, v22")
    cross_rows_allreduce(a, "v_add_f32", [20], [21])
    a(f"s_mov_b32 s41, {LOG2E | 0x80000000}")
    a("s_mov_b32 s44, 0x00550055"); a("s_mov_b32 s45, 0x00550055")
    a.stamp(17)
    poll(a, ["global_load_dword v24, v141, s[26:27] sc1", "global_load_dword v25, v142, s[26:27] offset:64 sc1"] +
            [f"global_load_dwordx4 v[{32+4*u}:{35+4*u}], v139, s[26:27] offset:{1024*u} sc1" for u in range(4)],
         [24, 25] + list(range(32, 48)), 12, "h3")
    a.stamp(18)
    row16_allreduce(a, "v_add_f32", [24, 25])
    sum4x4(a, 32)
    a("v_mul_f32 v25, 0x3b000000, v25")
    a("v_mul_f32 v24, 0x3b000000, v24")
    rows_reduce_scatter(a, 32)
    a("v_fma_f32 v24, -v25, v25, v24")
    a("v_max_f32 v24, 0, v24")
    round_bf16(a, 25); round_bf16(a, 24)
    a("v_add_f32 v24, 0x3727c5ac, v24")
    round_bf16(a, 24)
    a("v_sqrt_f32 v24, v24")
    a("v_fma_f32 v32, -v25, v20, v32")
    round_bf16(a, 24)
    a("v_rcp_f32 v24, v24")
    a("v_mul_f32 v32, v32, v24")
    round_bf16(a, 32)
    a("v_mul_f32 v34, s41, v32")
    a("v_exp_f32 v34, v34")
    a("v_mov_b32_dpp v33, v32 row_ror:8 row_mask:0xf bank_mask:0xf")
    a("v_add_f32 v34, 1.0, v34")
    a("v_rcp_f32 v34, v34")
    round_bf16(a, 34)
    a("v_mul_f32 v34, v34, v33")
    a("v_mov_b32_dpp v35, v34 quad_perm:[1,1,3,3] row_mask:0xf bank_mask:0xf")
    a("v_cvt_pk_bf16_f32 v34, v34, v35")
    a("v_min_u32 v34, -2, v34")
    a("s_mov_b64 exec, s[44:45]")
    store_local(a, "global_store_dword v143, v34, s[26:27]")
    a("s_mov_b64 exec, -1")
    a.stamp(19)
    a.label("L_act_done")
    a("s_cmp_eq_u32 s32, 7")
    a("s_cbranch_scc1 L_dn_done")
    poll(a, ["global_load_dwordx4 v[32:35], v135, s[26:27] sc1"], [32, 33, 34, 35], 12, "h4")
    a.stamp(20)
    a("s_waitcnt lgkmcnt(0)")
    a("v_mfma_f32_16x16x32_bf16 v[48:51], v[32:35], v[56:59], 0")
    a("v_mfma_f32_16x16x32_bf16 v[52:55], v[32:35], v[60:63], 0")
    a("s_mov_b64 exec, 0xffff")
    a("ds_write_b128 v136, v[48:51]")
    a("ds_write_b128 v136, v[52:55] offset:256")
    a("s_mov_b64 exec, -1")
    a.label("L_dn_done")
    a("s_waitcnt lgkmcnt(0)")
    a("s_barrier")
    a("s_cmp_lg_u32 s32, 0")
    a("s_cbranch_scc1 L_fin")
    for k in range(7):
        a(f"ds_read_b128 v[{32+4*k}:{35+4*k}], v137 offset:{512*k}")
    a("s_mov_b32 exec_hi, 0")
    a("s_waitcnt lgkmcnt(0)")
    for (d, s_) in ((32, 36), (40, 44), (48, 52), (32, 40), (48, 56), (32, 48)):
        a(f"v_pk_add_f32 v[{d}:{d+1}], v[{d}:{d+1}], v[{s_}:{s_+1}]")
        a(f"v_pk_add_f32 v[{d+2}:{d+3}], v[{d+2}:{d+3}], v[{s_+2}:{s_+3}]")
    for k in range(4):
        a(f"v_min_u32 v{32+k}, -2, v{32+k}")
    a("global_store_dwordx4 v138, v[32:35], s[26:27] sc1")
    a("s_mov_b32 exec_hi, -1")
    a.stamp(21)
    a("s_branch L_fin")
    a.label("L_qtail")
    a("s_barrier")
    a("s_cmp_eq_u32 s32, 7")
    a("s_cbranch_scc1 L_gw_done")
    a("s_mov_b32 m0, s47")
    a("global_load_lds_dwordx4 v132, s[16:17]")
    a("s_add_u32 m0, s47, 1024")
    a("global_load_lds_dwordx4 v133, s[16:17]")
    a("s_add_u32 m0, s47, 2048")
    a("global_load_lds_dwordx4 v132, s[18:19]")
    a("s_add_u32 m0, s47, 3072")
    a("global_load_lds_dwordx4 v133, s[18:19]")
    a("v_mov_b32 v24, 0x3f803f80")
    for tau in range(4):
        a(f"v_cmp_eq_u32 vcc, {tau}, v3")
        a(f"v_cndmask_b32 v{32+4*tau}, 0, v24, vcc")
        for k in range(1, 4): a(f"v_mov_b32 v{32+4*tau+k}, v{32+4*tau}")
    a("s_waitcnt vmcnt(0)")
    a.stamp(13)
    for tau in range(4):
        for hf in range(2):
            r = 96 + 4 * tau + 2 * hf
            a(f"ds_read_b64_tr_b16 v[{r}:{r+1}], v134 offset:{256*hf + 16*tau}")
    for tau in range(4):
        a(f"s_waitcnt lgkmcnt({6 - 2*tau})")
        c = "0" if tau == 0 else "v[20:23]"
        a(f"v_mfma_f32_16x16x32_bf16 v[20:23], v[{32+4*tau}:{35+4*tau}], v[{96+4*tau}:{99+4*tau}], {c}")
    for k in range(4):
        a(f"v_min_u32 v{20+k}, -2, v{20+k}")
    a("s_mov_b64 exec, 0xffff")
    store_local(a, "global_store_dwordx4 v129, v[20:23], s[26:27]")
    a("s_mov_b64 exec, -1")
    a.label("L_gw_done")
    a.stamp(14)
    a("s_cmp_ge_u32 s32, 4")
    a("s_cbranch_scc1 L_h2_done")
    poll(a, [f"global_load_dwordx4 v[{32+4*u}:{35+4*u}], v140, s[26:27] offset:{1024*u} sc1" for u in range(4)],
         list(range(32, 48)), 12, "h2")
    a.stamp(15)
    sum4x4(a, 32)
    rows_reduce_scatter(a, 32)
    a(dpp("v_add_f32", 32, 32, 32, "row_ror:8"))
    round_bf16(a, 32)
    a("v_add_f32 v32, v32, v142")
    a("v_cvt_pk_bf16_f32 v32, v32, v32")
    a("ds_write_b16 v141, v32")
    a.label("L_h2_done")
    a("s_waitcnt lgkmcnt(0)")
    a("s_barrier")
    a.stamp(16)
    a("s_cmp_eq_u32 s32, 7")
    a("s_cbranch_scc1 L_stats")
    for tau in range(4):
        a(f"ds_read_b128 v[{112+4*tau}:{115+4*tau}], v{135+tau}")
    for tau in range(4):
        a(f"s_waitcnt lgkmcnt({3 - tau})")
        c = "0" if tau == 0 else "v[20:23]"
        a(f"v_mfma_f32_16x16x32_bf16 v[20:23], v[{112+4*tau}:{115+4*tau}], v[{96+4*tau}:{99+4*tau}], {c}")
    for k in range(4):
        a(f"v_min_u32 v{20+k}, -2, v{20+k}")
    store_local(a, "global_store_dwordx4 v128, v[20:23], s[26:27]")
    a("s_branch L_p3_done")
    a.label("L_stats")
    a("ds_read_b128 v[112:115], v139")
    a("s_waitcnt lgkmcnt(0)")
    a("v_mfma_f32_16x16x32_bf16 v[20:23], v[112:115], v[112:115], 0")
    for k in range(4):
        a(f"v_min_u32 v{20+k}, -2, v{20+k}")
    a("s_mov_b64 exec, 0x000f000f")
    store_local(a, "global_store_dwordx4 v130, v[20:23], s[26:27]")
    a("s_mov_b64 exec, -1")
    a.label("L_p3_done")
    a.stamp(17)
    a("s_cmp_lg_u32 s32, 0")
    a("s_cbranch_scc1 L_fin")
    a("s_and_b32 s43, s31, 7")
    a("s_cmp_lg_u32 s43, s28")
    a("s_cbranch_scc1 L_fin")
    a("ds_read_u16 v24, v145")
    a("ds_read_u16 v25, v145 offset:64")
    a("s_waitcnt lgkmcnt(0)")
    a("v_lshlrev_b32 v24, 16, v24"); a("v_lshlrev_b32 v25, 16, v25")
    poll(a, [f"global_load_dwordx4 v[{32+4*u}:{35+4*u}], v143, s[26:27] offset:{1024*u} sc1" for u in range(4)],
         list(range(32, 48)), 12, "h5")
    a.stamp(18)
    sum4x4(a, 32)
    a("v_permlane32_swap_b32 v32, v34")
    a("v_permlane32_swap_b32 v33, v35")
    a("v_add_f32 v32, v32, v34"); a("v_add_f32 v33, v33, v35")
    a("v_cvt_pk_bf16_f32 v34, v32, v33")
    a("v_lshlrev_b32 v32, 16, v34"); a("v_and_b32 v33, 0xffff0000, v34")
    a("v_add_f32 v32, v32, v24"); a("v_add_f32 v33, v33, v25")
    a("v_cvt_pk_bf16_f32 v34, v32, v33")
    a("global_store_short v144, v34, s[22:23]")
    a("global_store_short_d16_hi v144, v34, s[22:23] offset:1024")
    a("s_cmp_lg_u32 s31, 0")
    a("s_cbranch_scc1 L_fin")
    a("s_add_u32 s43, s34, 1")
    a("v_mov_b32 v14, 0"); a("v_mov_b32 v15, s43")
    a("s_mov_b64 exec, 1")
    a("global_store_dword v14, v15, s[26:27]")
    a("s_mov_b64 exec, -1")
    a.label("L_fin")
    if stamps:
        a.stamp(30)
        a("s_lshl_b32 s41, s2, 12")
        a(f"s_add_u32 s41, s41, {WS_ST}")
        a("v_lshl_add_u32 v14, v0, 2, s41")
        a(f"global_store_dword v14, v{STV}, s[26:27]")
    a.label("L_end")
    a.lines = hz.fix(a.lines)
    return a

def emit(fname, **kw):
    a = build(**kw)
    txt = kernel_file([(NAME + "_kernel", a, 168, 102, 168)], [(NAME + "_kernel", (256, 1, 1), (576, 1, 1), LDS_BYTES)])
    txt = txt.replace("    s_endpgm\n", "    s_endpgm\n    .fill 2048, 4, 0xbf810000\n")
    open(fname, "w").write(txt)

if __name__ == "__main__":
    emit("v5.s")
    emit("v5st.s", stamps=True)
```

```python
import sys
from asmlib import *
import hz
from gen5 import (K, dpp, row16_allreduce, cross_rows_allreduce, rows_reduce_scatter, round_bf16, sum4x4,
                  store_local, wait_flag, signal, csync, sexpr, STV, POLL_MAX, LOG2E, SCALE, NCW)

WS_CERT = 0x1000
WS_ID = 0x2000
WS_QA = 0x10000
WS_QB = 0xD0000
WS_O  = 0x20000
WS_SM = 0x60000
SM_ML, SM_HH, SM_ST = 0x0, 0x400, 0x1000
WS_P2 = 0x80000
WS_P5 = 0xC0000
WS_C3 = 0xE0000
WS_P3 = 0x200000
WS_ST = 0x400000
L_K, L_V, L_RED, L_XR, L_XN = 0x0, 0x10000, 0x20000, 0x24000, 0x25000
L_WQ = L_V
L_WO = L_RED - 0x4000
XN_STRIDE = 1040
L_QL, L_PL, L_MX, L_LS, L_FL, L_HA = 0x26100, 0x26500, 0x26D00, 0x26D80, 0x26E40, 0x26F00
LDS_BYTES = 0x27100
F_WQ, F_K, F_V1, F_Q, F_QL, F_S2, F_S3, F_UF, F_ACT = 0, 4, 8, 12, 16, 20, 24, 28, 32
L_GW = L_K
L_DW = L_K

def poll(a, loads, regs, tmp, name, sleep=0, pre=False, prewait=0):
    lp = a.newlabel("L_poll_" + name); dn = a.newlabel("L_done_" + name); ck = a.newlabel("L_chk_" + name)
    a(f"s_mov_b32 s3, {POLL_MAX}")
    if pre:
        a(f"s_waitcnt vmcnt({prewait})")
        a(f"s_branch {ck}")
    a.label(lp)
    for l in loads: a(l)
    a("s_waitcnt vmcnt(0)")
    a.label(ck)
    rs = list(regs)
    if len(rs) == 1:
        a(f"v_cmp_eq_u32 vcc, -1, v{rs[0]}")
    else:
        if len(rs) % 2 == 0:
            a(f"v_max_u32 v{tmp}, v{rs[0]}, v{rs[1]}"); rs = rs[2:]
        else:
            a(f"v_max3_u32 v{tmp}, v{rs[0]}, v{rs[1]}, v{rs[2]}"); rs = rs[3:]
        while rs:
            a(f"v_max3_u32 v{tmp}, v{tmp}, v{rs[0]}, v{rs[1]}"); rs = rs[2:]
        a(f"v_cmp_eq_u32 vcc, -1, v{tmp}")
    a("s_and_b64 exec, vcc, vcc")
    a(f"s_cbranch_scc0 {dn}")
    if sleep: a(f"s_sleep {sleep}")
    a("s_sub_u32 s3, s3, 1")
    a(f"s_cbranch_scc0 {lp}")
    a.label(dn)
    a("s_mov_b64 exec, -1")

def build(stamps=False, nt=True, fwq_after=24, fk_after=40, pfwait=True, dpf=True):
    a = K(stamps)
    NT = " nt" if nt else ""
    G, T, B, U, W = "s28", "s29", "s30", "s31", "s32"
    a("s_load_dwordx16 s[4:19], s[0:1], 0")
    a("s_load_dwordx8 s[20:27], s[0:1], 64")
    a("s_cmp_ge_u32 s2, 256")
    a("s_cbranch_scc1 L_end")
    if stamps:
        a(f"v_mov_b32 v{STV}, -1")
        a("s_memrealtime s[100:101]")
    a("v_lshrrev_b32 v4, 6, v0")
    a("v_and_b32 v1, 63, v0")
    a("v_readfirstlane_b32 s32, v4")
    a("s_and_b32 s28, s2, 7")
    a("s_lshr_b32 s29, s2, 3")
    a("s_lshr_b32 s30, s29, 3")
    a("s_and_b32 s31, s29, 3")
    a("s_lshl_b32 s36, s30, 2")
    a("s_add_u32 s31, s31, s36")
    a("s_bfe_u32 s38, s29, 0x10002")
    a("v_lshrrev_b32 v2, 4, v1")
    a("v_and_b32 v3, 15, v1")
    a("v_lshlrev_b32 v5, 4, v1")
    a(f"v_mov_b32 v6, {L_FL}")
    a("s_cmp_lg_u32 s32, 0")
    a("s_cbranch_scc1 L_compute")
    a("s_setprio 2")
    sexpr(a, "s39", [(T, 17), (G, 10)])
    a("v_mov_b32 v8, 0")
    a("v_lshl_add_u32 v7, v3, 2, v6")
    a("ds_write_b32 v7, v8")
    a("s_mov_b32 s3, 16")
    a("s_waitcnt lgkmcnt(0)")
    if stamps: a(f"v_writelane_b32 v{STV}, s100, 0")
    a("s_add_u32 s14, s10, s39"); a("s_addc_u32 s15, s11, 0")
    a.label("L_pf_loop")
    a("global_load_dwordx4 v[16:19], v5, s[14:15]")
    a("s_add_u32 s14, s14, 0x2000"); a("s_addc_u32 s15, s15, 0")
    a("s_sub_u32 s3, s3, 1")
    a("s_cmp_lg_u32 s3, 0")
    a("s_cbranch_scc1 L_pf_loop")
    a("s_and_b32 s37, s29, 7")
    sexpr(a, "s36", [(B, 24), (G, 21), ("s37", 16)], 6144*256)
    a("s_add_u32 s6, s6, s36"); a("s_addc_u32 s7, s7, 0")
    a("s_add_u32 s8, s8, s36"); a("s_addc_u32 s9, s9, 0")
    a("v_lshlrev_b32 v7, 8, v2")
    for u in range(4):
        a(f"v_add_u32 v8, {4*u}, v2")
        a(f"v_xor_b32 v8, v8, v3")
        a(f"v_lshl_add_u32 v{10+u}, v8, 4, v7")
    for u in range(2):
        a(f"v_lshl_add_u32 v8, v2, 1, {8*u}")
        a(f"v_xor_b32 v8, v8, v3")
        a(f"v_lshl_add_u32 v{14+u}, v8, 4, v7")
    a("v_mov_b32 v8, 1")
    a("v_lshrrev_b32 v9, 2, v1")
    a("v_and_b32 v7, 3, v1")
    a("v_lshlrev_b32 v7, 4, v7")
    def kv_loop(base, regs, n, lab):
        a(f"s_mov_b32 s3, {n}")
        a.label(lab)
        for u in range(4):
            a(f"global_load_lds_dwordx4 v{regs[u % len(regs)]}, s[{base}:{base+1}] offset:{1024*u}{NT}")
        a("s_add_u32 m0, m0, 4096")
        a(f"s_add_u32 s{base}, s{base}, 4096"); a(f"s_addc_u32 s{base+1}, s{base+1}, 0")
        a("s_sub_u32 s3, s3, 1")
        a("s_cmp_lg_u32 s3, 0")
        a(f"s_cbranch_scc1 {lab}")
    def strided(n, step, lab):
        a(f"s_mov_b32 s3, {n}")
        a.label(lab)
        a("global_load_lds_dwordx4 v9, s[10:11]")
        a("s_add_u32 m0, m0, 1024")
        a(f"s_add_u32 s10, s10, {step}"); a("s_addc_u32 s11, s11, 0")
        a("s_sub_u32 s3, s3, 1")
        a("s_cmp_lg_u32 s3, 0")
        a(f"s_cbranch_scc1 {lab}")
    a("s_cmp_eq_u32 s38, 0")
    a("s_cbranch_scc1 L_ld_o")
    a("v_lshl_add_u32 v9, v9, 13, v7")
    sexpr(a, "s37", [(G, 10), (U, 6)])
    a("s_add_u32 s10, s10, s37"); a("s_addc_u32 s11, s11, 0")
    a(f"s_mov_b32 m0, {L_WQ}")
    if pfwait: a("s_waitcnt vmcnt(0)")
    a.stamp(6)
    strided(32, 0x20000, "L_wq_loop")
    a(f"s_mov_b32 m0, {L_K}")
    kv_loop(6, [10, 11, 12, 13], fwq_after // 4, "L_k1")
    a("s_barrier")
    a(f"s_waitcnt vmcnt({fwq_after})")
    a(f"ds_write_b32 v6, v8 offset:{F_WQ}")
    a.stamp(1)
    wait_flag(a, F_Q, 2, "lq")
    kv_loop(6, [10, 11, 12, 13], 16 - fwq_after // 4, "L_k2")
    kv_loop(8, [14, 15], fk_after // 4, "L_v1")
    a(f"s_waitcnt vmcnt({fk_after})")
    a(f"ds_write_b32 v6, v8 offset:{F_K}")
    a.stamp(2)
    kv_loop(8, [14, 15], 16 - fk_after // 4, "L_v2")
    a("s_branch L_ld_end")
    a.label("L_ld_o")
    sexpr(a, "s37", [(G, 19), (U, 15)])
    a("s_add_u32 s14, s12, s37"); a("s_addc_u32 s15, s13, 0")
    a("s_mov_b32 s3, 8")
    a("s_barrier")
    a.label("L_pfo_loop")
    for u in range(4):
        a(f"global_load_dwordx4 v[16:19], v5, s[14:15] offset:{1024*u}")
    a("s_add_u32 s14, s14, 4096"); a("s_addc_u32 s15, s15, 0")
    a("s_sub_u32 s3, s3, 1")
    a("s_cmp_lg_u32 s3, 0")
    a("s_cbranch_scc1 L_pfo_loop")
    a("v_lshl_add_u32 v9, v9, 10, v7")
    sexpr(a, "s37", [(G, 19), (U, 6)])
    a("s_add_u32 s10, s12, s37"); a("s_addc_u32 s11, s13, 0")
    a(f"s_mov_b32 m0, {L_K}")
    kv_loop(6, [10, 11, 12, 13], 16, "L_k3")
    a(f"s_mov_b32 m0, {L_WO}")
    strided(32, 0x4000, "L_wo_loop")
    a(f"s_mov_b32 m0, {L_V}")
    kv_loop(8, [14, 15], fk_after // 4, "L_v3")
    a(f"s_waitcnt vmcnt({fk_after})")
    a(f"ds_write_b32 v6, v8 offset:{F_K}")
    a.stamp(2)
    kv_loop(8, [14, 15], 12 - fk_after // 4, "L_v4")
    wait_flag(a, F_Q, 8, "lo")
    kv_loop(8, [14, 15], 4, "L_v5")
    a.label("L_ld_end")
    a.stamp(3)
    a("s_waitcnt vmcnt(16)")
    a(f"ds_write_b32 v6, v8 offset:{F_V1}")
    a.stamp(4)
    a("s_waitcnt vmcnt(0)")
    a.stamp(5)
    a("s_barrier")
    a("s_branch L_fin")
    a.label("L_compute")
    a("s_sub_u32 s32, s32, 1")
    a("v_mov_b32 v8, 1")
    a("v_and_b32 v9, 3, v3")
    a("v_lshrrev_b32 v13, 2, v3")
    a("v_mov_b32 v16, -1"); a("v_mov_b32 v17, -1"); a("v_mov_b32 v18, -1"); a("v_mov_b32 v19, -1")
    a("v_lshlrev_b32 v10, 6, v1")
    a("s_waitcnt lgkmcnt(0)")
    if stamps: a(f"v_writelane_b32 v{STV}, s100, 0")
    a("s_load_dword s34, s[26:27], 0")
    a("s_getreg_b32 s35, hwreg(HW_REG_XCC_ID, 0, 4)")
    a("s_cmp_eq_u32 s38, 0")
    a("s_cbranch_scc1 L_p_done")
    a("s_cmp_eq_u32 s32, 2")
    a("s_cbranch_scc1 L_p_pf")
    a("s_cmp_ge_u32 s32, 2")
    a("s_cbranch_scc1 L_p_done")
    for u in range(4):
        a(f"global_load_dwordx4 v[{32+4*u}:{35+4*u}], v10, s[4:5] offset:{16*u}")
    sexpr(a, "s42", [(U, 1), (W, 0)])
    sexpr(a, "s39", [(G, 15), ("s42", 10)], WS_O)
    a("v_add_u32 v11, s39, v5")
    a("global_store_dwordx4 v11, v[16:19], s[26:27] sc1")
    sexpr(a, "s39", [(G, 13), ("s42", 8)], WS_SM)
    sexpr(a, "s41", [(U, 12), (G, 9), (W, 8)], WS_P5)
    a(f"s_sub_u32 s43, s41, {WS_P5 - WS_P2}")
    a("v_mov_b32 v11, s43"); a("v_mov_b32 v12, s41")
    a("v_cmp_eq_u32 vcc, 1, v2"); a("v_cndmask_b32 v11, v11, v12, vcc")
    a("v_mov_b32 v12, s39")
    a("v_cmp_eq_u32 vcc, 0, v2"); a("v_cndmask_b32 v11, v11, v12, vcc")
    a("v_lshl_add_u32 v11, v3, 4, v11")
    a("global_store_dwordx4 v11, v[16:19], s[26:27] sc1")
    a("s_branch L_p_done")
    a.label("L_p_pf")
    a("s_getpc_b64 s[14:15]")
    a("s_lshl_b32 s39, s31, 10")
    a("v_add_u32 v11, s39, v5")
    a("global_load_dwordx4 v[32:35], v11, s[14:15]")
    a.label("L_p_done")
    a("s_waitcnt lgkmcnt(0)")
    a("s_mul_i32 s33, s34, 0x9e3779b1")
    a("s_add_u32 s33, s33, 0x7f4a7c15")
    a("s_and_b32 s33, s33, 0xfffffff0")
    a("s_or_b32 s33, s33, s35")
    a("s_cmp_lg_u32 s32, 3")
    a("s_cbranch_scc1 L_noid")
    sexpr(a, "s39", [(G, 7), (T, 2)], WS_ID)
    a("v_mov_b32 v11, s39"); a("v_mov_b32 v12, s33")
    a("s_mov_b64 exec, 1")
    a("global_store_dword v11, v12, s[26:27] sc1")
    a("s_mov_b64 exec, -1")
    a.label("L_noid")
    a("s_cmp_ge_u32 s32, 2")
    a("s_cbranch_scc1 L_q_skip")
    a("s_cmp_eq_u32 s38, 0")
    a("s_cbranch_scc1 L_q_skip")
    a(f"v_mul_u32_u24 v11, {XN_STRIDE}, v9")
    a("v_lshl_add_u32 v11, v2, 4, v11")
    a(f"v_add_u32 v11, {L_XN}, v11")
    a(f"v_add_u32 v12, {L_XR}, v10")
    a("s_waitcnt vmcnt(2)")
    a.stamp(1)
    for u in range(4):
        a(f"ds_write_b128 v12, v[{32+4*u}:{35+4*u}] offset:{16*u}")
    F = 64
    for k in range(16):
        a(f"v_lshlrev_b32 v{F+2*k}, 16, v{32+k}")
        a(f"v_and_b32 v{F+2*k+1}, 0xffff0000, v{32+k}")
    a(f"v_pk_add_f32 v[20:21], v[{F}:{F+1}], v[{F+2}:{F+3}]")
    a(f"v_pk_add_f32 v[22:23], v[{F+4}:{F+5}], v[{F+6}:{F+7}]")
    for k in range(4, 16, 2):
        a(f"v_pk_add_f32 v[20:21], v[20:21], v[{F+2*k}:{F+2*k+1}]")
        a(f"v_pk_add_f32 v[22:23], v[22:23], v[{F+2*k+2}:{F+2*k+3}]")
    a("v_pk_add_f32 v[20:21], v[20:21], v[22:23]")
    a("v_add_f32 v20, v20, v21")
    row16_allreduce(a, "v_add_f32", [20])
    a("v_mul_f32 v20, 0xbb000000, v20")
    a("v_mov_b32 v21, v20")
    a("v_mov_b32 v22, 0"); a("v_mov_b32 v23, 0")
    for k in range(16):
        a(f"v_pk_add_f32 v[24:25], v[{F+2*k}:{F+2*k+1}], v[20:21]")
        a(f"v_pk_fma_f32 v[22:23], v[24:25], v[24:25], v[22:23]")
    a("v_add_f32 v22, v22, v23")
    row16_allreduce(a, "v_add_f32", [22])
    a("v_mul_f32 v22, 0x3b000000, v22")
    round_bf16(a, 20); round_bf16(a, 22)
    a("v_mov_b32 v21, v20")
    a("v_add_f32 v22, 0x3727c5ac, v22")
    round_bf16(a, 22)
    a("v_sqrt_f32 v22, v22")
    round_bf16(a, 22)
    a("v_rcp_f32 v22, v22")
    for k in range(16):
        a(f"v_pk_add_f32 v[{F+2*k}:{F+2*k+1}], v[{F+2*k}:{F+2*k+1}], v[20:21]")
    a("v_mov_b32 v23, v22")
    for k in range(16):
        a(f"v_cvt_pk_bf16_f32 v{32+k}, v{F+2*k}, v{F+2*k+1}")
    for k in range(16):
        a(f"v_lshlrev_b32 v{F+2*k}, 16, v{32+k}")
        a(f"v_and_b32 v{F+2*k+1}, 0xffff0000, v{32+k}")
    for k in range(16):
        a(f"v_pk_mul_f32 v[{F+2*k}:{F+2*k+1}], v[{F+2*k}:{F+2*k+1}], v[22:23]")
    for k in range(16):
        a(f"v_cvt_pk_bf16_f32 v{32+k}, v{F+2*k}, v{F+2*k+1}")
    a(f"v_mul_u32_u24 v12, {XN_STRIDE}, v2")
    a("v_lshl_add_u32 v12, v3, 6, v12")
    a(f"v_add_u32 v12, {L_XN}, v12")
    for u in range(4):
        a(f"ds_write_b128 v12, v[{32+4*u}:{35+4*u}] offset:{16*u}")
    for ks in range(16):
        a(f"ds_read_b128 v[{96+4*ks}:{99+4*ks}], v11 offset:{64*ks}")
    a("v_lshlrev_b32 v12, 9, v2")
    a("v_lshl_add_u32 v12, v13, 6, v12")
    a("v_lshl_add_u32 v12, v9, 3, v12")
    sexpr(a, "s39", [(W, 5)], L_WQ)
    a("v_add_u32 v12, s39, v12")
    sexpr(a, "s39", [(G, 13), (U, 7), (W, 6)], WS_QA)
    a("v_lshlrev_b32 v14, 11, v2")
    a("v_lshl_add_u32 v14, v3, 2, v14")
    a("v_add_u32 v14, s39, v14")
    a(f"v_add_u32 v15, {WS_QB - WS_QA}, v14")
    a("v_cmp_eq_u32 s[44:45], 1, v2")
    a("v_cmp_eq_u32 s[46:47], 2, v2")
    a("v_cmp_eq_u32 s[48:49], 3, v2")
    a("v_mov_b32 v25, s33")
    a.stamp(2)
    a("s_barrier")
    wait_flag(a, F_WQ, 1, "wq", sleep=0)
    a.stamp(3)
    for ks in range(16):
        r = 32 + 4 * ks
        a(f"ds_read_b64_tr_b16 v[{r}:{r+1}], v12 offset:{2048*ks}")
        a(f"ds_read_b64_tr_b16 v[{r+2}:{r+3}], v12 offset:{2048*ks + 256}")
        if ks >= 6:
            k2 = ks - 6
            a("s_waitcnt lgkmcnt(12)")
            c = "0" if k2 == 0 else "v[20:23]"
            a(f"v_mfma_f32_16x16x32_bf16 v[20:23], v[{96+4*k2}:{99+4*k2}], v[{32+4*k2}:{35+4*k2}], {c}")
    for k2 in range(10, 16):
        a(f"s_waitcnt lgkmcnt({2*(15-k2)})")
        a(f"v_mfma_f32_16x16x32_bf16 v[20:23], v[{96+4*k2}:{99+4*k2}], v[{32+4*k2}:{35+4*k2}], v[20:23]")
    a("v_cndmask_b32 v20, v20, v21, s[44:45]")
    a("v_cndmask_b32 v20, v20, v22, s[46:47]")
    a("v_cndmask_b32 v20, v20, v23, s[48:49]")
    a("v_mov_b32_dpp v21, v20 quad_perm:[1,1,3,3] row_mask:0xf bank_mask:0xf")
    a("v_cvt_pk_bf16_f32 v24, v20, v21")
    a("s_waitcnt vmcnt(0)")
    a("s_mov_b32 exec_lo, 0x55555555")
    a("s_mov_b32 exec_hi, 0x55555555")
    a("global_store_dwordx2 v14, v[24:25], s[26:27]")
    a("global_store_dwordx2 v15, v[24:25], s[26:27] sc1")
    a("s_mov_b64 exec, -1")
    signal(a, F_Q)
    a.stamp(4)
    a("s_branch L_q_done")
    a.label("L_q_skip")
    a("s_barrier")
    a.label("L_q_done")
    a("v_lshlrev_b32 v14, 8, v9")
    a("v_lshl_add_u32 v14, v2, 4, v14")
    a(f"v_add_u32 v14, {L_QL}, v14")
    a("s_lshl_b32 s39, s32, 13")
    a("v_lshl_add_u32 v12, v3, 8, s39")
    for t in range(4):
        a(f"v_add_u32 v24, {4*t}, v2")
        a("v_xor_b32 v24, v24, v3")
        a(f"v_lshl_add_u32 v{28+t}, v24, 4, v12")
    sexpr(a, "s41", [(W, 4)], L_MX)
    a("v_lshl_add_u32 v17, v9, 2, s41")
    a(f"v_lshlrev_b32 v18, 2, v9"); a(f"v_add_u32 v18, {L_MX}, v18")
    a("v_lshlrev_b32 v15, 6, v2"); a("v_lshl_add_u32 v15, v9, 4, v15")
    a(f"v_add_u32 v15, {L_PL}, v15")
    a("s_lshl_b32 s40, s32, 8")
    a("v_add_u32 v11, s40, v15")
    a("v_lshl_add_u32 v12, v2, 2, v13")
    a("v_and_b32 v24, 7, v12"); a("v_lshlrev_b32 v24, 1, v24")
    a("v_lshrrev_b32 v16, 1, v9")
    a("s_lshl_b32 s40, s32, 1")
    a("v_add_u32 v16, s40, v16")
    a("v_xor_b32 v24, v24, v16")
    a("v_lshlrev_b32 v16, 8, v12")
    a("v_lshl_add_u32 v16, v24, 4, v16")
    a("v_and_b32 v24, 1, v3")
    a("v_lshl_add_u32 v16, v24, 3, v16")
    a(f"v_add_u32 v16, {L_V}, v16")
    a("s_lshr_b32 s43, s32, 1"); a("s_and_b32 s46, s32, 1")
    sexpr(a, "s41", [(G, 15), ("s43", 11), ("s38", 10), (U, 6), ("s46", 5)], WS_O)
    a("v_lshlrev_b32 v10, 13, v9")
    a("v_lshl_add_u32 v10, v2, 3, v10")
    a("v_add_u32 v10, s41, v10")
    for r in range(128, 153): a(f"v_mov_b32 v{r}, 0")
    a("s_cmp_lg_u32 s38, 0")
    a("s_cbranch_scc1 L_prep_q")
    sexpr(a, "s41", [(G, 15), (W, 12)], WS_O)
    a("v_lshlrev_b32 v128, 6, v3"); a("v_lshl_add_u32 v128, v2, 4, v128"); a("v_add_u32 v128, s41, v128")
    sexpr(a, "s41", [(G, 13), ("s43", 8)], WS_SM + SM_ML)
    a("v_and_b32 v12, 7, v3"); a("v_lshlrev_b32 v129, 3, v12")
    a("v_lshl_add_u32 v129, v2, 6, v129")
    a("v_add_u32 v129, s41, v129")
    sexpr(a, "s41", [(W, 9)], L_RED)
    a("v_lshl_add_u32 v130, v3, 4, s41"); a("v_lshl_add_u32 v130, v2, 2, v130")
    a("v_and_b32 v12, 31, v1"); a("v_lshlrev_b32 v12, 4, v12")
    a("v_lshrrev_b32 v24, 5, v1"); a("v_lshl_add_u32 v131, v24, 11, v12"); a(f"v_add_u32 v131, {L_RED}, v131")
    sexpr(a, "s41", [(U, 12), (G, 9)], WS_P5)
    a("v_add_u32 v138, s41, v12")
    a(f"v_subrev_u32 v144, {WS_P5 - WS_P2}, v138")
    a("s_mul_i32 s41, s28, 224"); a("s_lshl_b32 s42, s32, 5"); a("s_add_u32 s41, s41, s42")
    a("s_min_u32 s41, s41, 1760")
    sexpr(a, "s41", [("s41", 10), (U, 6)])
    a("s_add_u32 s20, s20, s41"); a("s_addc_u32 s21, s21, 0")
    a("v_lshrrev_b32 v132, 2, v1"); a("v_lshlrev_b32 v132, 10, v132")
    a("v_lshl_add_u32 v132, v9, 4, v132")
    a("v_add_u32 v133, 0x4000, v132")
    a("v_lshlrev_b32 v134, 9, v2")
    a("v_lshl_add_u32 v134, v13, 6, v134")
    a("v_lshl_add_u32 v134, v9, 3, v134")
    sexpr(a, "s41", [(W, 12)], L_WO)
    a("v_add_u32 v137, s41, v134")
    sexpr(a, "s47", [(W, 11)], L_DW)
    a("v_add_u32 v134, s47, v134")
    sexpr(a, "s41", [(G, 13), (W, 6)], WS_SM + SM_HH)
    a("v_lshlrev_b32 v135, 9, v9")
    a("v_lshl_add_u32 v135, v2, 4, v135")
    a("v_add_u32 v135, s41, v135")
    sexpr(a, "s41", [(W, 9)], L_RED + 0x2000)
    a("v_lshl_add_u32 v136, v3, 4, s41")
    a("s_branch L_prep_done")
    a.label("L_prep_q")
    a("s_min_u32 s46, s32, 6")
    sexpr(a, "s41", [(G, 17), ("s46", 14), (U, 8)], WS_P3)
    a("v_lshlrev_b32 v128, 12, v2"); a("v_lshl_add_u32 v128, v3, 4, v128"); a("v_add_u32 v128, s41, v128")
    sexpr(a, "s41", [(G, 15), ("s46", 12), (U, 6)], WS_C3)
    a("v_lshlrev_b32 v129, 10, v2"); a("v_lshl_add_u32 v129, v3, 2, v129"); a("v_add_u32 v129, s41, v129")
    sexpr(a, "s41", [(G, 13), (U, 7)], WS_SM + SM_ST)
    a("v_lshlrev_b32 v130, 6, v2"); a("v_lshl_add_u32 v130, v3, 4, v130"); a("v_add_u32 v130, s41, v130")
    a("s_mul_i32 s41, s31, 114688")
    a("s_mul_i32 s42, s28, 448"); a("s_add_u32 s41, s41, s42")
    a("s_lshl_b32 s42, s46, 6"); a("s_add_u32 s41, s41, s42")
    a("s_add_u32 s16, s16, s41"); a("s_addc_u32 s17, s17, 0")
    a("s_add_u32 s18, s18, s41"); a("s_addc_u32 s19, s19, 0")
    a("v_lshrrev_b32 v132, 2, v1"); a("v_mul_u32_u24 v132, 3584, v132")
    a("v_lshl_add_u32 v132, v9, 4, v132")
    a(f"v_add_u32 v133, {16*3584}, v132")
    sexpr(a, "s47", [(W, 12)], L_GW)
    a("v_lshlrev_b32 v134, 9, v2")
    a("v_lshl_add_u32 v134, v13, 6, v134")
    a("v_and_b32 v12, 1, v3"); a("v_lshl_add_u32 v134, v12, 3, v134")
    a("v_and_b32 v12, 2, v3"); a("v_lshl_add_u32 v134, v12, 10, v134")
    a("v_add_u32 v134, s47, v134")
    a(f"v_lshlrev_b32 v12, 6, v9"); a("v_lshl_add_u32 v12, v2, 4, v12"); a(f"v_add_u32 v12, {L_HA}, v12")
    a(f"v_mov_b32 v24, {L_HA + 320}")
    for tau in range(4):
        a(f"v_cmp_eq_u32 vcc, {tau}, v13")
        a(f"v_cndmask_b32 v{135+tau}, v24, v12, vcc")
    a(f"v_mov_b32 v12, {L_HA + 256}")
    a("v_cmp_eq_u32 vcc, 4, v3")
    a("v_cndmask_b32 v139, v135, v12, vcc")
    a("v_mov_b32 v24, 0x3f803f80")
    a("v_and_b32 v12, 31, v1")
    a("v_cmp_gt_u32 vcc, 16, v12")
    a("v_cndmask_b32 v24, 0, v24, vcc")
    a("v_lshlrev_b32 v12, 2, v12"); a(f"v_add_u32 v12, {L_HA + 256}, v12")
    a("ds_write_b32 v12, v24")
    sexpr(a, "s41", [(U, 12)], WS_P5)
    a("v_add_u32 v143, s41, v5")
    a(f"v_subrev_u32 v140, {WS_P5 - WS_P2}, v143")
    a("v_and_b32 v12, 31, v1"); a("v_lshlrev_b32 v12, 1, v12")
    a("v_lshrrev_b32 v24, 5, v1")
    a("v_lshl_add_u32 v144, v24, 11, v12")
    a("s_lshl_b32 s41, s31, 6"); a("v_add_u32 v144, s41, v144")
    a("v_lshl_add_u32 v145, v24, 7, v12"); a(f"v_add_u32 v145, {L_HA}, v145")
    a(f"v_add_u32 v146, {L_XR}, v144")
    sexpr(a, "s41", [(G, 7)], WS_CERT)
    a("v_and_b32 v12, 7, v1"); a("v_lshl_add_u32 v141, v12, 2, s41")
    a("s_mul_i32 s41, s28, 224"); a("s_mul_i32 s42, s31, 14"); a("s_add_u32 s41, s41, s42")
    sexpr(a, "s41", [("s41", 10), ("s46", 11)])
    a("s_add_u32 s20, s20, s41"); a("s_addc_u32 s21, s21, 0")
    a("s_and_b32 s42, s32, 1")
    sexpr(a, "s48", [(U, 1), ("s42", 0)])
    a("s_min_u32 s48, s48, 27")
    a("s_cmp_eq_u32 s32, 7")
    a("s_cbranch_scc1 L_prep_done")
    sexpr(a, "s41", [(G, 17), ("s48", 12)], WS_P3)
    a("v_add_u32 v148, s41, v5")
    sexpr(a, "s41", [(G, 15), ("s48", 10)], WS_C3)
    a("v_lshl_add_u32 v149, v1, 2, s41")
    sexpr(a, "s41", [(G, 13)], WS_SM + SM_ST)
    a("v_lshl_add_u32 v151, v3, 7, s41")
    a("v_mul_u32_u24 v24, 20, v2"); a("v_add_u32 v150, v151, v24")
    a("v_lshl_add_u32 v151, v2, 4, v151")
    sexpr(a, "s41", [(G, 13), ("s48", 4)], WS_SM + SM_HH)
    a("v_lshlrev_b32 v152, 9, v2"); a("v_lshl_add_u32 v152, v3, 1, v152"); a("v_add_u32 v152, s41, v152")
    a.label("L_prep_done")
    a.stamp(9)
    a("s_cmp_lg_u32 s32, 7")
    a("s_cbranch_scc1 L_qp_done")
    a("s_setprio 3")
    sexpr(a, "s39", [(G, 13), (B, 11)], WS_QA)
    a("v_add_u32 v20, s39, v5")
    a(f"v_add_u32 v21, {WS_QB - WS_QA}, v20")
    sexpr(a, "s39", [(G, 7)], WS_ID)
    a("v_and_b32 v22, 31, v1"); a("v_lshl_add_u32 v22, v22, 2, s39")
    a(f"v_lshlrev_b32 v23, 3, v1"); a(f"v_add_u32 v23, {L_QL}, v23")
    D = 4
    QR = [112, 120, 148, 156]
    IR = [164, 165, 166, 4]
    def qissue(k):
        ad = 21 if k == D - 1 else 20
        a(f"global_load_dwordx4 v[{QR[k]}:{QR[k]+3}], v{ad}, s[26:27] sc1")
        a(f"global_load_dwordx4 v[{QR[k]+4}:{QR[k]+7}], v{ad}, s[26:27] offset:1024 sc1")
        a(f"global_load_dword v{IR[k]}, v22, s[26:27] sc1")
    for k in range(D - 1):
        qissue(k); a("s_sleep 8")
    a(f"s_mov_b32 s3, {POLL_MAX}")
    a.label("L_qpoll")
    for k in range(D):
        qissue((k + D - 1) % D)
        a(f"s_waitcnt vmcnt({3*(D-1)})")
        r = QR[k]
        a(f"v_xor_b32 v32, s33, v{r+1}"); a(f"v_xor_b32 v33, s33, v{r+3}")
        a(f"v_xor_b32 v34, s33, v{r+5}"); a(f"v_xor_b32 v35, s33, v{r+7}")
        a(f"v_xor_b32 v36, s33, v{IR[k]}")
        a("v_or3_b32 v32, v32, v33, v34"); a("v_or3_b32 v32, v32, v35, v36")
        a(f"v_mov_b32 v24, v{r}"); a(f"v_mov_b32 v25, v{r+2}"); a(f"v_mov_b32 v26, v{r+4}"); a(f"v_mov_b32 v27, v{r+6}")
        a("v_cmp_lt_u32 vcc, 15, v32")
        a("s_cbranch_vccz L_qok")
        a("s_sleep 2")
    a("s_sub_u32 s3, s3, 1")
    a("s_cbranch_scc0 L_qpoll")
    a.label("L_qok")
    a("ds_write_b64 v23, v[24:25]")
    a("ds_write_b64 v23, v[26:27] offset:512")
    a("v_cmp_ne_u32 vcc, 0, v36")
    a("s_or_b32 s35, vcc_lo, vcc_hi")
    a("v_mov_b32 v20, s35")
    a(f"ds_write_b32 v6, v20 offset:{F_UF}")
    signal(a, F_QL)
    a("s_setprio 0")
    a.stamp(5)
    a.label("L_qp_done")
    wait_flag(a, F_K, 1, "k")
    a.stamp(6)
    for tau in range(2):
        for t in range(4):
            r = 32 + 16 * tau + 4 * t
            a(f"ds_read_b128 v[{r}:{r+3}], v{28+t} offset:{4096*tau}")
    a("s_cmp_lg_u32 s38, 0")
    a("s_cbranch_scc1 L_nowo")
    for kl in range(2):
        for nu in range(2):
            for hf in range(2):
                r = 96 + 8 * kl + 4 * nu + 2 * hf
                a(f"ds_read_b64_tr_b16 v[{r}:{r+1}], v137 offset:{2048*kl + 256*hf + 32*nu}")
    a("s_waitcnt lgkmcnt(0)")
    signal(a, F_Q)
    a.label("L_nowo")
    wait_flag(a, F_QL, 1, "ql")
    a.stamp(7)
    for t in range(4):
        a(f"ds_read_b128 v[{64+4*t}:{67+4*t}], v14 offset:{64*t}")
    a(f"ds_read_b32 v7, v6 offset:{F_UF}")
    S = 80
    for t in range(4):
        a(f"s_waitcnt lgkmcnt({4 - t})")
        for tau in range(2):
            r = 32 + 16 * tau + 4 * t
            c = "0" if t == 0 else f"v[{S+4*tau}:{S+3+4*tau}]"
            a(f"v_mfma_f32_16x16x32_bf16 v[{S+4*tau}:{S+3+4*tau}], v[{r}:{r+3}], v[{64+4*t}:{67+4*t}], {c}")
    a("s_waitcnt lgkmcnt(0)")
    a("v_readfirstlane_b32 s35, v7")
    a(f"s_mov_b32 s40, {SCALE}"); a(f"s_mov_b32 s41, {SCALE}")
    for k in range(4):
        a(f"v_cvt_pk_bf16_f32 v{20+k}, v{S+2*k}, v{S+1+2*k}")
    for k in range(4):
        a(f"v_lshlrev_b32 v{S+2*k}, 16, v{20+k}")
        a(f"v_and_b32 v{S+1+2*k}, 0xffff0000, v{20+k}")
    for k in range(4):
        a(f"v_pk_mul_f32 v[{S+2*k}:{S+1+2*k}], v[{S+2*k}:{S+1+2*k}], s[40:41]")
    for k in range(4):
        a(f"v_cvt_pk_bf16_f32 v{20+k}, v{S+2*k}, v{S+1+2*k}")
    for k in range(4):
        a(f"v_lshlrev_b32 v{S+2*k}, 16, v{20+k}")
        a(f"v_and_b32 v{S+1+2*k}, 0xffff0000, v{20+k}")
    a(f"v_max3_f32 v12, v{S}, v{S+1}, v{S+2}")
    a(f"v_max3_f32 v14, v{S+3}, v{S+4}, v{S+5}")
    a(f"v_max3_f32 v12, v12, v{S+6}, v{S+7}")
    a("v_max_f32 v12, v12, v14")
    cross_rows_allreduce(a, "v_max_f32", [12], [14])
    a("ds_write_b32 v17, v12")
    a(f"s_mov_b32 s39, {LOG2E}")
    for k in range(8):
        a(f"v_sub_f32 v{S+k}, v{S+k}, v12")
    for k in range(8):
        a(f"v_mul_f32 v{S+k}, s39, v{S+k}")
    for k in range(8):
        a(f"v_exp_f32 v{S+k}, v{S+k}")
    for k in range(4):
        a(f"v_cvt_pk_bf16_f32 v{20+k}, v{S+2*k}, v{S+1+2*k}")
    a("ds_write_b128 v11, v[20:23]")
    a(f"v_add_f32 v12, v{S}, v{S+1}"); a(f"v_add_f32 v14, v{S+2}, v{S+3}"); a(f"v_add_f32 v24, v{S+4}, v{S+5}"); a(f"v_add_f32 v25, v{S+6}, v{S+7}")
    a("v_add_f32 v12, v12, v14"); a("v_add_f32 v24, v24, v25"); a("v_add_f32 v12, v12, v24")
    cross_rows_allreduce(a, "v_add_f32", [12], [14])
    a(f"ds_write_b32 v17, v12 offset:{L_LS - L_MX}")
    signal(a, F_S3)
    a("s_cmp_eq_u32 s38, 0")
    a("s_cbranch_scc1 L_nolate")
    a("v_mov_b32 v24, -1"); a("v_mov_b32 v25, -1"); a("v_mov_b32 v26, -1"); a("v_mov_b32 v27, -1")
    store_local(a, ["global_store_dwordx4 v128, v[24:27], s[26:27]", "global_store_dword v129, v24, s[26:27]"])
    a.label("L_nolate")
    a("s_or_b32 s39, s29, s32")
    a("s_cmp_lg_u32 s39, 0")
    a("s_cbranch_scc1 L_nocert")
    sexpr(a, "s39", [(G, 2)], WS_CERT)
    a("v_lshl_add_u32 v12, v1, 7, s39"); a("v_mov_b32 v14, s33")
    a("s_mov_b64 exec, 0xff")
    a("global_store_dword v12, v14, s[26:27] sc1")
    a("s_mov_b64 exec, -1")
    a.label("L_nocert")
    wait_flag(a, F_S3, NCW, "s3", sleep=0)
    a.stamp(8)
    for ks in range(8):
        a(f"ds_read_b128 v[{64+4*ks}:{67+4*ks}], v15 offset:{256*ks}")
    for k in range(8):
        a(f"ds_read_b32 v{32+k}, v18 offset:{16*k}")
    a(f"s_mov_b32 s39, {LOG2E}")
    a("s_waitcnt lgkmcnt(0)")
    a("v_max3_f32 v12, v32, v33, v34")
    a("v_max3_f32 v14, v35, v36, v37")
    a("v_max3_f32 v12, v12, v38, v39")
    a("v_max_f32 v19, v12, v14")
    for k in range(8): a(f"v_sub_f32 v{32+k}, v{32+k}, v19")
    for k in range(8): a(f"v_mul_f32 v{32+k}, s39, v{32+k}")
    for k in range(8): a(f"v_exp_f32 v{24+k}, v{32+k}")
    a("s_cmp_lg_u32 s32, 2")
    a("s_cbranch_scc1 L_noml")
    for k in range(8):
        a(f"ds_read_b32 v{32+k}, v18 offset:{L_LS - L_MX + 16*k}")
    sexpr(a, "s41", [(G, 13), (T, 3)], WS_SM + SM_ML)
    a("v_lshl_add_u32 v14, v9, 8, s41")
    a("s_waitcnt lgkmcnt(0)")
    a("v_mul_f32 v21, v32, v24")
    for k in range(1, 8): a(f"v_fmac_f32 v21, v{32+k}, v{24+k}")
    a("v_min_u32 v20, -2, v19"); a("v_min_u32 v21, -2, v21")
    a("s_mov_b64 exec, 15")
    store_local(a, "global_store_dwordx2 v14, v[20:21], s[26:27]")
    a("s_mov_b64 exec, -1")
    a.label("L_noml")
    a("s_mov_b32 s44, 0x000f000f"); a("s_mov_b32 s45, 0x000f000f")
    def fac(ks, three):
        p = 24 + (ks & ~1)
        if three: m = "op_sel:[0,1,0] op_sel_hi:[1,1,1]" if ks & 1 else "op_sel:[0,0,0] op_sel_hi:[1,0,1]"
        else: m = "op_sel:[0,1] op_sel_hi:[1,1]" if ks & 1 else "op_sel:[0,0] op_sel_hi:[1,0]"
        return f"v[{p}:{p+1}]", m
    wait_flag(a, F_V1, 1, "v1")
    a.stamp(10)
    for ks in range(6):
        for hf in range(2):
            r = 32 + 4 * ks + 2 * hf
            a(f"ds_read_b64_tr_b16 v[{r}:{r+1}], v16 offset:{8192*ks + 4096*hf}")
    for ks in range(6):
        a(f"s_waitcnt lgkmcnt({10 - 2*ks})")
        a(f"v_mfma_f32_16x16x32_bf16 v[{64+4*ks}:{67+4*ks}], v[{32+4*ks}:{35+4*ks}], v[{64+4*ks}:{67+4*ks}], 0")
    f, m = fac(0, False)
    a(f"v_pk_mul_f32 v[20:21], v[64:65], {f} {m}"); a(f"v_pk_mul_f32 v[22:23], v[66:67], {f} {m}")
    for ks in range(1, 6):
        f, m = fac(ks, True)
        a(f"v_pk_fma_f32 v[20:21], v[{64+4*ks}:{65+4*ks}], {f}, v[20:21] {m}")
        a(f"v_pk_fma_f32 v[22:23], v[{66+4*ks}:{67+4*ks}], {f}, v[22:23] {m}")
    h1loads = (["global_load_dwordx2 v[146:147], v129, s[26:27] sc1"] +
               [f"global_load_dwordx4 v[{112+4*n}:{115+4*n}], v128, s[26:27] offset:{1024*n} sc1" for n in range(4)])
    a("s_cmp_lg_u32 s38, 0")
    a("s_cbranch_scc1 L_nopre")
    for l in h1loads: a(l)
    a.label("L_nopre")
    a.stamp(11)
    a("s_barrier")
    for ks in range(6, 8):
        for hf in range(2):
            r = 32 + 4 * ks + 2 * hf
            a(f"ds_read_b64_tr_b16 v[{r}:{r+1}], v16 offset:{8192*ks + 4096*hf}")
    for ks in range(6, 8):
        a(f"s_waitcnt lgkmcnt({14 - 2*ks})")
        a(f"v_mfma_f32_16x16x32_bf16 v[{64+4*ks}:{67+4*ks}], v[{32+4*ks}:{35+4*ks}], v[{64+4*ks}:{67+4*ks}], 0")
    for ks in range(6, 8):
        f, m = fac(ks, True)
        a(f"v_pk_fma_f32 v[20:21], v[{64+4*ks}:{65+4*ks}], {f}, v[20:21] {m}")
        a(f"v_pk_fma_f32 v[22:23], v[{66+4*ks}:{67+4*ks}], {f}, v[22:23] {m}")
    a("s_cmp_eq_u32 s38, 0")
    a("s_cbranch_scc1 L_nowait")
    a("s_waitcnt vmcnt(0)")
    a.label("L_nowait")
    a("v_cvt_pk_bf16_f32 v24, v20, v21")
    a("v_cvt_pk_bf16_f32 v25, v22, v23")
    a("v_min_u32 v24, -2, v24"); a("v_min_u32 v25, -2, v25")
    a("s_mov_b64 exec, s[44:45]")
    store_local(a, "global_store_dwordx2 v10, v[24:25], s[26:27]")
    a("s_mov_b64 exec, -1")
    a.stamp(12)
    a("s_cmp_lg_u32 s38, 0")
    a("s_cbranch_scc1 L_qtail")
    a(f"s_mov_b32 s41, {LOG2E}")
    poll(a, h1loads[:1], [146, 147], 12, "ml", pre=True, prewait=5)
    a(dpp("v_max_f32", 22, 146, 146, "quad_perm:[1,0,3,2]"))
    a(dpp("v_max_f32", 22, 22, 22, "quad_perm:[2,3,0,1]"))
    a(dpp("v_max_f32", 22, 22, 22, "row_half_mirror"))
    a("v_sub_f32 v20, v146, v22"); a("v_mul_f32 v20, s41, v20"); a("v_exp_f32 v20, v20")
    a("v_mul_f32 v21, v147, v20")
    for ctrl in ("quad_perm:[1,0,3,2]", "quad_perm:[2,3,0,1]", "row_half_mirror"):
        a(dpp("v_add_f32", 21, 21, 21, ctrl))
    for s_ in range(8):
        a(f"v_mov_b32_dpp v{24+s_}, v20 row_newbcast:{s_} row_mask:0xf bank_mask:0xf")
    a("v_rcp_f32 v21, v21")
    a.stamp(13)
    poll(a, h1loads[1:], list(range(112, 128)), 12, "h1", pre=True, prewait=0)
    a.stamp(14)
    for kl in range(2):
        for sh in range(2):
            for nu in range(2):
                d = 64 + 8 * sh + 4 * nu
                c = "0" if kl == 0 else f"v[{d}:{d+3}]"
                A = 112 + 4 * (2 * kl + sh); Bq = 96 + 8 * kl + 4 * nu
                a(f"v_mfma_f32_16x16x32_bf16 v[{d}:{d+3}], v[{A}:{A+3}], v[{Bq}:{Bq+3}], {c}")
    for nu in range(2):
        d0 = 64 + 4 * nu
        a(f"v_pk_mul_f32 v[{48+2*nu}:{49+2*nu}], v[{d0}:{d0+1}], v[24:25]")
        a(f"v_pk_fma_f32 v[{48+2*nu}:{49+2*nu}], v[{d0+2}:{d0+3}], v[26:27], v[{48+2*nu}:{49+2*nu}]")
    for nu in range(2):
        d1 = 72 + 4 * nu
        a(f"v_pk_fma_f32 v[{48+2*nu}:{49+2*nu}], v[{d1}:{d1+1}], v[28:29], v[{48+2*nu}:{49+2*nu}]")
        a(f"v_pk_fma_f32 v[{48+2*nu}:{49+2*nu}], v[{d1+2}:{d1+3}], v[30:31], v[{48+2*nu}:{49+2*nu}]")
    a("v_add_f32 v48, v48, v49"); a("v_add_f32 v50, v50, v51")
    a("v_mul_f32 v48, v48, v21"); a("v_mul_f32 v50, v50, v21")
    a("ds_write_b32 v130, v48")
    a("ds_write_b32 v130, v50 offset:256")
    a("s_waitcnt lgkmcnt(0)")
    a("s_barrier")
    a("s_cmp_lg_u32 s32, 0")
    a("s_cbranch_scc1 L_p2_done")
    def reduce8_store(rd, off, dest, nvalid=8):
        for k in range(4):
            a(f"ds_read_b128 v[{32+4*k}:{35+4*k}], v{rd} offset:{off + 512*k}")
        a("s_waitcnt lgkmcnt(0)")
        sum4x4(a, 32)
        for k in range(4): a(f"v_mov_b32 v{36+k}, v{32+k}")
        for k in range(4): a(f"v_permlane32_swap_b32 v{32+k}, v{36+k}")
        a("v_pk_add_f32 v[32:33], v[32:33], v[36:37]"); a("v_pk_add_f32 v[34:35], v[34:35], v[38:39]")
        for k in range(4): a(f"v_min_u32 v{32+k}, -2, v{32+k}")
        a("s_mov_b32 exec_hi, 0")
        a(f"global_store_dwordx4 v{dest}, v[32:35], s[26:27] sc1")
        a("s_mov_b32 exec_hi, -1")
    reduce8_store(131, 0, 144)
    a.label("L_p2_done")
    a.stamp(15)
    a("s_barrier")
    a("s_mov_b32 m0, s47")
    a("global_load_lds_dwordx4 v132, s[20:21]")
    a("s_add_u32 m0, s47, 1024")
    a("global_load_lds_dwordx4 v133, s[20:21]")
    a("s_waitcnt vmcnt(0)")
    for nu in range(2):
        for hf in range(2):
            a(f"ds_read_b64_tr_b16 v[{56+4*nu+2*hf}:{57+4*nu+2*hf}], v134 offset:{256*hf + 32*nu}")
    a.stamp(16)
    a("v_mov_b32 v48, 0"); a("v_mov_b32 v49, 0"); a("v_mov_b32 v50, 0"); a("v_mov_b32 v51, 0")
    a("v_mov_b32 v52, 0"); a("v_mov_b32 v53, 0"); a("v_mov_b32 v54, 0"); a("v_mov_b32 v55, 0")
    a("s_cmp_eq_u32 s32, 7")
    a("s_cbranch_scc1 L_dn_done")
    poll(a, ["global_load_dwordx4 v[32:35], v135, s[26:27] sc1"], [32, 33, 34, 35], 12, "h4")
    a.stamp(20)
    a("s_waitcnt lgkmcnt(0)")
    a("v_mfma_f32_16x16x32_bf16 v[48:51], v[32:35], v[56:59], 0")
    a("v_mfma_f32_16x16x32_bf16 v[52:55], v[32:35], v[60:63], 0")
    a.label("L_dn_done")
    a("s_mov_b64 exec, 0xffff")
    a("ds_write_b128 v136, v[48:51]")
    a("ds_write_b128 v136, v[52:55] offset:256")
    a("s_mov_b64 exec, -1")
    a("s_waitcnt lgkmcnt(0)")
    a("s_barrier")
    a("s_cmp_lg_u32 s32, 0")
    a("s_cbranch_scc1 L_fin")
    reduce8_store(131, 0x2000, 138)
    a.stamp(21)
    a("s_branch L_fin")
    h3loads = ([f"global_load_dword v{48+n}, v149, s[26:27] offset:{256*n} sc1" for n in range(4)] +
               ["global_load_dword v52, v150, s[26:27] sc1", "global_load_dword v53, v151, s[26:27] offset:64 sc1"] +
               [f"global_load_dwordx4 v[{32+4*u}:{35+4*u}], v148, s[26:27] offset:{1024*u} sc1" for u in range(4)])
    a.label("L_qtail")
    a("s_barrier")
    a("s_cmp_eq_u32 s32, 7")
    a("s_cbranch_scc1 L_h2")
    a("s_mov_b32 m0, s47")
    a("global_load_lds_dwordx4 v132, s[16:17]")
    a("s_add_u32 m0, s47, 1024")
    a("global_load_lds_dwordx4 v133, s[16:17]")
    a("s_add_u32 m0, s47, 2048")
    a("global_load_lds_dwordx4 v132, s[18:19]")
    a("s_add_u32 m0, s47, 3072")
    a("global_load_lds_dwordx4 v133, s[18:19]")
    if dpf:
        a("global_load_dwordx4 v[56:59], v5, s[20:21]")
        a("global_load_dwordx4 v[60:63], v5, s[20:21] offset:1024")
    a("v_mov_b32 v24, 0x3f803f80")
    for tau in range(4):
        a(f"v_cmp_eq_u32 vcc, {4*tau}, v3")
        a(f"v_cndmask_b32 v{32+4*tau}, 0, v24, vcc")
        for k in range(1, 4): a(f"v_mov_b32 v{32+4*tau+k}, v{32+4*tau}")
    a(f"s_waitcnt vmcnt({2 if dpf else 0})")
    a.stamp(13)
    for tau in range(4):
        for hf in range(2):
            r = 96 + 4 * tau + 2 * hf
            a(f"ds_read_b64_tr_b16 v[{r}:{r+1}], v134 offset:{256*hf + 16*tau}")
    for tau in range(4):
        a(f"s_waitcnt lgkmcnt({6 - 2*tau})")
        c = "0" if tau == 0 else "v[20:23]"
        a(f"v_mfma_f32_16x16x32_bf16 v[20:23], v[{32+4*tau}:{35+4*tau}], v[{96+4*tau}:{99+4*tau}], {c}")
    a("v_min_u32 v20, -2, v20")
    store_local(a, "global_store_dword v129, v20, s[26:27]")
    a(f"s_mov_b32 s41, {LOG2E | 0x80000000}")
    a("s_mov_b32 s44, 0x00550055"); a("s_mov_b32 s45, 0x00550055")
    a("s_cmp_ge_u32 s32, 2")
    a("s_cbranch_scc1 L_h2_done")
    for l in h3loads: a(l)
    a.stamp(14)
    a("s_branch L_h2_done")
    a.label("L_h2")
    a("ds_read_u16 v24, v146")
    a("ds_read_u16 v25, v146 offset:1024")
    a(f"s_mov_b32 s3, {POLL_MAX}")
    a.label("L_certpoll")
    a("global_load_dword v20, v141, s[26:27] sc1")
    a("s_waitcnt vmcnt(0)")
    a("v_xor_b32 v20, s33, v20")
    a("v_cmp_lt_u32 vcc, 15, v20")
    a("s_cbranch_vccz L_cert_ok")
    a("s_sleep 4")
    a("s_sub_u32 s3, s3, 1")
    a("s_cbranch_scc0 L_certpoll")
    a.label("L_cert_ok")
    a("s_waitcnt lgkmcnt(0)")
    a("v_lshlrev_b32 v24, 16, v24"); a("v_lshlrev_b32 v25, 16, v25")
    def gather8(addr, name, st):
        poll(a, [f"global_load_dwordx4 v[{32+4*u}:{35+4*u}], v{addr}, s[26:27] offset:{1024*u} sc1" for u in range(4)],
             list(range(32, 48)), 12, name)
        a.stamp(st)
        sum4x4(a, 32)
        a("v_permlane32_swap_b32 v32, v34")
        a("v_permlane32_swap_b32 v33, v35")
        a("v_add_f32 v32, v32, v34"); a("v_add_f32 v33, v33, v35")
        a("v_cvt_pk_bf16_f32 v34, v32, v33")
        a("v_lshlrev_b32 v32, 16, v34"); a("v_and_b32 v33, 0xffff0000, v34")
        a("v_add_f32 v32, v32, v24"); a("v_add_f32 v33, v33, v25")
        a("v_cvt_pk_bf16_f32 v34, v32, v33")
    gather8(140, "h2", 15)
    a("ds_write_b16 v145, v34")
    a("ds_write_b16_d16_hi v145, v34 offset:64")
    a("v_lshlrev_b32 v24, 16, v34"); a("v_and_b32 v25, 0xffff0000, v34")
    a.label("L_h2_done")
    a("s_waitcnt lgkmcnt(0)")
    a("s_barrier")
    a.stamp(16)
    a("s_cmp_eq_u32 s32, 7")
    a("s_cbranch_scc1 L_stats")
    for tau in range(4):
        a(f"ds_read_b128 v[{112+4*tau}:{115+4*tau}], v{135+tau}")
    for tau in range(4):
        a(f"s_waitcnt lgkmcnt({3 - tau})")
        c = "0" if tau == 0 else "v[20:23]"
        a(f"v_mfma_f32_16x16x32_bf16 v[20:23], v[{112+4*tau}:{115+4*tau}], v[{96+4*tau}:{99+4*tau}], {c}")
    for k in range(4):
        a(f"v_min_u32 v{20+k}, -2, v{20+k}")
    store_local(a, "global_store_dwordx4 v128, v[20:23], s[26:27]")
    a.stamp(17)
    a("s_cmp_ge_u32 s32, 2")
    a("s_cbranch_scc1 L_fin")
    a("s_cmp_ge_u32 s31, 14")
    a("s_cbranch_scc1 L_fin")
    poll(a, h3loads, list(range(32, 54)), 12, "h3")
    a.stamp(19)
    a("v_add_f32 v48, v48, v49"); a("v_add_f32 v50, v50, v51")
    row16_allreduce(a, "v_add_f32", [52, 53])
    a("v_add_f32 v48, v48, v50")
    sum4x4(a, 32)
    cross_rows_allreduce(a, "v_add_f32", [48], [49])
    a("v_mul_f32 v25, 0x3b000000, v53")
    a("v_mul_f32 v24, 0x3b000000, v52")
    rows_reduce_scatter(a, 32)
    a("v_fma_f32 v24, -v25, v25, v24")
    a("v_max_f32 v24, 0, v24")
    round_bf16(a, 25); round_bf16(a, 24)
    a("v_add_f32 v24, 0x3727c5ac, v24")
    round_bf16(a, 24)
    a("v_sqrt_f32 v24, v24")
    a("v_fma_f32 v32, -v25, v48, v32")
    round_bf16(a, 24)
    a("v_rcp_f32 v24, v24")
    a("v_mul_f32 v32, v32, v24")
    round_bf16(a, 32)
    a("v_mul_f32 v34, s41, v32")
    a("v_exp_f32 v34, v34")
    a("v_mov_b32_dpp v33, v32 row_ror:8 row_mask:0xf bank_mask:0xf")
    a("v_add_f32 v34, 1.0, v34")
    a("v_rcp_f32 v34, v34")
    round_bf16(a, 34)
    a("v_mul_f32 v34, v34, v33")
    a("v_mov_b32_dpp v35, v34 quad_perm:[1,1,3,3] row_mask:0xf bank_mask:0xf")
    a("v_cvt_pk_bf16_f32 v34, v34, v35")
    a("v_min_u32 v34, -2, v34")
    a("s_mov_b64 exec, s[44:45]")
    store_local(a, "global_store_dword v152, v34, s[26:27]")
    a("s_mov_b64 exec, -1")
    a.stamp(20)
    a("s_branch L_fin")
    a.label("L_stats")
    a("ds_read_b128 v[112:115], v139")
    a("s_waitcnt lgkmcnt(0)")
    a("v_mfma_f32_16x16x32_bf16 v[20:23], v[112:115], v[112:115], 0")
    for k in range(4):
        a(f"v_min_u32 v{20+k}, -2, v{20+k}")
    a("s_mov_b64 exec, 0x000f000f")
    store_local(a, "global_store_dwordx4 v130, v[20:23], s[26:27]")
    a("s_mov_b64 exec, -1")
    a.stamp(17)
    a("s_and_b32 s43, s31, 7")
    a("s_cmp_lg_u32 s43, s28")
    a("s_cbranch_scc1 L_fin")
    gather8(143, "h5", 21)
    a("global_store_short v144, v34, s[22:23]")
    a("global_store_short_d16_hi v144, v34, s[22:23] offset:1024")
    a("s_cmp_lg_u32 s31, 0")
    a("s_cbranch_scc1 L_fin")
    a("s_add_u32 s43, s34, 1")
    a("v_mov_b32 v14, 0"); a("v_mov_b32 v15, s43")
    a("s_mov_b64 exec, 1")
    a("global_store_dword v14, v15, s[26:27]")
    a("s_mov_b64 exec, -1")
    a.label("L_fin")
    if stamps:
        a.stamp(30)
        a("s_lshl_b32 s41, s2, 12")
        a(f"s_add_u32 s41, s41, {WS_ST}")
        a("v_lshl_add_u32 v14, v0, 2, s41")
        a(f"global_store_dword v14, v{STV}, s[26:27]")
    a.label("L_end")
    a.lines = hz.fix(a.lines)
    return a

def emit(fname, **kw):
    a = build(**kw)
    txt = kernel_file([(NAME + "_kernel", a, 168, 102, 168)], [(NAME + "_kernel", (256, 1, 1), (576, 1, 1), LDS_BYTES)])
    txt = txt.replace("    s_endpgm\n", "    s_endpgm\n    .fill 2048, 4, 0xbf810000\n")
    open(fname, "w").write(txt)

if __name__ == "__main__":
    emit("v7.s")
    emit("v7st.s", stamps=True)
```

```python
import sys
from asmlib import *
import hz
from gen5 import (K, dpp, row16_allreduce, cross_rows_allreduce, rows_reduce_scatter, round_bf16, sum4x4,
                  wait_flag, signal, sexpr, STV, POLL_MAX, LOG2E, SCALE)

WS_CERT = 0x1000
WS_ID = 0x2000
WS_QA = 0x10000
WS_QB = 0xD0000
WS_O  = 0x20000
WS_SM = 0x60000
SM_ML, SM_HH, SM_ST = 0x0, 0x400, 0x1000
WS_P2 = 0x80000
WS_P5 = 0xC0000
WS_C3 = 0xE0000
WS_P3 = 0x200000
WS_P1 = 0x300000
WS_ST = 0x400000
L_K, L_V = 0x0, 0x12000
L_WQ = L_V
L_XR, L_XN = 0x10000, 0x22000
L_WO = 0x8000
XN_STRIDE = 1040
L_QL, L_PL, L_MX, L_LS, L_FL, L_HA, L_RED = 0x24000, 0x24400, 0x24D00, 0x24E00, 0x24F80, 0x25000, 0x25200
LDS_BYTES = 0x26200
F_WQ, F_K, F_G, F_Q, F_QL, F_L, F_S3, F_UF = 0, 4, 8, 12, 16, 20, 24, 28
L_GW = L_K
L_DW = L_K

def store_local(a, instrs):
    if isinstance(instrs, str): instrs = [instrs]
    l1 = a.newlabel("L_wt"); l2 = a.newlabel("L_st")
    a("s_cmp_lg_u32 s35, 0")
    a(f"s_cbranch_scc1 {l1}")
    for i in instrs: a(i)
    a.label(l2)
    a.cold.append((l1, [i + " sc1" for i in instrs], l2))

def poll(a, loads, regs, tmp, name, sleep=0, pre=False, prewait=0):
    lp = a.newlabel("L_poll_" + name); dn = a.newlabel("L_done_" + name); ck = a.newlabel("L_chk_" + name)
    a(f"s_mov_b32 s3, {POLL_MAX}")
    if pre:
        a(f"s_waitcnt vmcnt({prewait})")
        a(f"s_branch {ck}")
    a.label(lp)
    for l in loads: a(l)
    a("s_waitcnt vmcnt(0)")
    a.label(ck)
    rs = list(regs)
    if len(rs) == 1:
        a(f"v_cmp_eq_u32 vcc, -1, v{rs[0]}")
    else:
        if len(rs) % 2 == 0:
            a(f"v_max_u32 v{tmp}, v{rs[0]}, v{rs[1]}"); rs = rs[2:]
        else:
            a(f"v_max3_u32 v{tmp}, v{rs[0]}, v{rs[1]}, v{rs[2]}"); rs = rs[3:]
        while rs:
            a(f"v_max3_u32 v{tmp}, v{tmp}, v{rs[0]}, v{rs[1]}"); rs = rs[2:]
        a(f"v_cmp_eq_u32 vcc, -1, v{tmp}")
    a("s_and_b64 exec, vcc, vcc")
    a(f"s_cbranch_scc0 {dn}")
    if sleep: a(f"s_sleep {sleep}")
    a("s_sub_u32 s3, s3, 1")
    a(f"s_cbranch_scc0 {lp}")
    a.label(dn)
    a("s_mov_b64 exec, -1")

def spoll(a, slots, tmp, name, pre=False, prewait=0, mask0=56):
    lp = a.newlabel("L_poll_" + name); dn = a.newlabel("L_done_" + name); ck = a.newlabel("L_chk_" + name)
    a(f"s_mov_b32 s3, {POLL_MAX}")
    if pre:
        a(f"s_waitcnt vmcnt({prewait})")
    else:
        for loads, regs in slots:
            for l in loads: a(l)
        a("s_waitcnt vmcnt(0)")
    a(f"s_branch {ck}")
    a.label(lp)
    for j, (loads, regs) in enumerate(slots):
        sk = a.newlabel("L_sk_" + name)
        a(f"s_mov_b64 exec, s[{mask0+2*j}:{mask0+2*j+1}]")
        a(f"s_cbranch_execz {sk}")
        for l in loads: a(l)
        a.label(sk)
    a("s_mov_b64 exec, -1")
    a("s_waitcnt vmcnt(0)")
    a.label(ck)
    for j, (loads, regs) in enumerate(slots):
        rs = list(regs); t = tmp[j]
        if len(rs) == 1:
            t = rs[0]
        else:
            if len(rs) % 2 == 0:
                a(f"v_max_u32 v{t}, v{rs[0]}, v{rs[1]}"); rs = rs[2:]
            else:
                a(f"v_max3_u32 v{t}, v{rs[0]}, v{rs[1]}, v{rs[2]}"); rs = rs[3:]
            while rs:
                a(f"v_max3_u32 v{t}, v{t}, v{rs[0]}, v{rs[1]}"); rs = rs[2:]
        a(f"v_cmp_eq_u32 s[{mask0+2*j}:{mask0+2*j+1}], -1, v{t}")
    a(f"s_or_b64 vcc, s[{mask0}:{mask0+1}], s[{mask0+2}:{mask0+3}]")
    for j in range(2, len(slots)):
        a(f"s_or_b64 vcc, vcc, s[{mask0+2*j}:{mask0+2*j+1}]")
    a(f"s_cbranch_scc0 {dn}")
    a("s_sub_u32 s3, s3, 1")
    a(f"s_cbranch_scc0 {lp}")
    a.label(dn)

def wait_prog(a, need, name, sleep=1):
    lp = a.newlabel("L_wp_" + name); dn = a.newlabel("L_wpd_" + name)
    a(f"s_mov_b32 s3, {POLL_MAX*8}")
    a.label(lp)
    a(f"ds_read_b32 v7, v6 offset:{F_K}")
    a("s_waitcnt lgkmcnt(0)")
    a("v_readfirstlane_b32 s39, v7")
    a(f"s_cmp_ge_i32 s39, {need}")
    a(f"s_cbranch_scc1 {dn}")
    if sleep: a(f"s_sleep {sleep}")
    a("s_sub_u32 s3, s3, 1")
    a(f"s_cbranch_scc0 {lp}")
    a.label(dn)

def build(stamps=False, nt=True, k_before=8, k_after=24, D=12, DK=12, dpf=False, gdelay=False, NKO=9, NKQ=7, womid=False, pregather=True, sp=True, a2=3, a5=True, QD=3, qstart=8, qsl=12, lsl=1, h4d=0, h4s=0, h2d=0, h1s=0, gul=False, dlate=True, gtouch=False, stw=16, fine=False, sparse=True, a5b=True, p5=7, wearly=True, p2=7, spf=False):
    a = K(stamps)
    a.cold = []
    NT = " nt" if nt else ""
    G, T, B, U, W = "s28", "s29", "s30", "s31", "s32"
    a("s_load_dwordx16 s[4:19], s[0:1], 0")
    a("s_load_dwordx8 s[20:27], s[0:1], 64")
    a("s_cmp_ge_u32 s2, 256")
    a("s_cbranch_scc1 L_end")
    if stamps:
        a(f"v_mov_b32 v{STV}, -1")
        a("s_memrealtime s[100:101]")
    a("v_lshrrev_b32 v4, 6, v0")
    a("v_and_b32 v1, 63, v0")
    a("v_readfirstlane_b32 s32, v4")
    a("s_and_b32 s28, s2, 7")
    a("s_lshr_b32 s29, s2, 3")
    a("v_lshlrev_b32 v5, 4, v1")
    a("s_lshr_b32 s30, s29, 3")
    a("s_and_b32 s37, s29, 3")
    a("s_lshl_b32 s36, s30, 2")
    a("s_add_u32 s31, s37, s36")
    a("s_bfe_u32 s38, s29, 0x10002")
    a("v_lshrrev_b32 v2, 4, v1")
    a("v_and_b32 v3, 15, v1")
    a(f"v_mov_b32 v6, {L_FL}")
    a("s_cmp_lg_u32 s32, 0")
    a("s_cbranch_scc1 L_compute")
    a("s_setprio 2")
    sexpr(a, "s39", [(T, 17), (G, 10)])
    a("v_mov_b32 v8, 0")
    a("v_lshl_add_u32 v7, v3, 2, v6")
    a("ds_write_b32 v7, v8")
    a("s_mov_b32 s3, 16")
    a("s_waitcnt lgkmcnt(0)")
    if stamps: a(f"v_writelane_b32 v{STV}, s100, 0")
    a("s_add_u32 s14, s10, s39"); a("s_addc_u32 s15, s11, 0")
    a("s_lshl_b32 s42, s29, 13")
    a.label("L_pf_loop")
    a("s_and_b32 s42, s42, 0x1e000")
    a("v_add_u32 v7, s42, v5")
    a("global_load_dwordx4 v[16:19], v7, s[14:15]")
    a("s_add_u32 s42, s42, 0x2000")
    a("s_sub_u32 s3, s3, 1")
    a("s_cmp_lg_u32 s3, 0")
    a("s_cbranch_scc1 L_pf_loop")
    a("v_lshlrev_b32 v7, 8, v2")
    for u in range(4):
        a(f"v_add_u32 v8, {4*u}, v2")
        a(f"v_xor_b32 v8, v8, v3")
        a(f"v_lshl_add_u32 v{10+u}, v8, 4, v7")
    for u in range(2):
        a(f"v_lshl_add_u32 v8, v2, 1, {8*u}")
        a(f"v_xor_b32 v8, v8, v3")
        a(f"v_lshl_add_u32 v{14+u}, v8, 4, v7")
    a("v_mov_b32 v8, 1")
    sexpr(a, "s36", [(B, 24), (G, 21)], 6144*256)
    a("s_mul_i32 s50, s30, 3"); a("s_add_u32 s50, s50, s28"); a("s_and_b32 s51, s29, 7"); a("s_lshl_b32 s51, s51, 1"); a("s_add_u32 s50, s50, s51")
    a("s_and_b32 s50, s50, 15")
    a(f"s_min_u32 s50, s50, {2*min(NKO, NKQ) - 1}")
    a("s_lshl_b32 s50, s50, 12")
    def post():
        a("v_add_u32 v20, 1, v20")
        a(f"ds_write_b32 v6, v20 offset:{F_K}")
    def kv_loop(base, regs, n, lab, prog=True, D=D, pf=False):
        a(f"s_mov_b32 s3, {n}")
        a.label(lab)
        a(f"s_add_u32 s52, s{base}, s50"); a(f"s_addc_u32 s53, s{base+1}, 0")
        for u in range(4):
            if pf: a(f"global_load_dwordx4 v[16:19], v5, s[52:53] offset:{1024*u}")
            else: a(f"global_load_lds_dwordx4 v{regs[u % len(regs)]}, s[52:53] offset:{1024*u}{NT}")
        a("s_add_u32 m0, m0, 4096")
        a("s_add_u32 s50, s50, 4096")
        a("s_cmp_eq_u32 s50, s51")
        a("s_cselect_b32 s50, 0, s50")
        if prog:
            a(f"s_waitcnt vmcnt({4*D})")
            post()
        a("s_sub_u32 s3, s3, 1")
        a("s_cmp_lg_u32 s3, 0")
        a(f"s_cbranch_scc1 {lab}")
    def kv_bases():
        a("s_add_u32 s6, s6, s36"); a("s_addc_u32 s7, s7, 0")
        a("s_add_u32 s8, s8, s36"); a("s_addc_u32 s9, s9, 0")
    a("s_cmp_eq_u32 s38, 0")
    a("s_cbranch_scc1 L_ld_o")
    a(f"s_mul_i32 s37, s37, {NKQ*8192}"); a("s_add_u32 s36, s36, s37"); a(f"s_add_u32 s36, s36, {4*NKO*8192}")
    kv_bases()
    a(f"s_mov_b32 s51, {NKQ*8192}")
    a(f"s_mov_b32 s41, {2*NKQ}")
    if k_before:
        a(f"s_mov_b32 m0, {L_K}")
        kv_loop(6, [10, 11, 12, 13], k_before // 4, "L_k0", prog=False)
    a("v_lshrrev_b32 v9, 2, v1")
    a("v_and_b32 v7, 3, v1")
    a("v_lshlrev_b32 v7, 4, v7")
    a("v_lshl_add_u32 v9, v9, 13, v7")
    sexpr(a, "s37", [(G, 10), (U, 6)])
    a("s_add_u32 s10, s10, s37"); a("s_addc_u32 s11, s11, 0")
    a(f"s_mov_b32 m0, {L_WQ}")
    a("s_mov_b32 s3, 32")
    a(f"s_waitcnt vmcnt({k_before})")
    a.stamp(6)
    a.label("L_wq_loop")
    a("global_load_lds_dwordx4 v9, s[10:11]")
    a("s_add_u32 m0, m0, 1024")
    a("s_add_u32 s10, s10, 0x20000"); a("s_addc_u32 s11, s11, 0")
    a("s_sub_u32 s3, s3, 1")
    a("s_cmp_lg_u32 s3, 0")
    a("s_cbranch_scc1 L_wq_loop")
    a(f"s_mov_b32 m0, {L_K + 1024*k_before}")
    kv_loop(6, [10, 11, 12, 13], k_after // 4, "L_k1", prog=False)
    a("s_barrier")
    a(f"s_waitcnt vmcnt({k_after})")
    a(f"ds_write_b32 v6, v8 offset:{F_WQ}")
    a.stamp(1)
    wait_flag(a, F_Q, 2, "lq")
    a(f"v_mov_b32 v20, {(k_before + k_after) // 4 - DK}")
    a(f"s_mov_b32 s42, {2*NKQ - (k_before + k_after) // 4}")
    a("s_branch L_ld_k")
    a.label("L_ld_o")
    a(f"s_mul_i32 s37, s37, {NKO*8192}"); a("s_add_u32 s36, s36, s37")
    kv_bases()
    a(f"s_mov_b32 s51, {NKO*8192}")
    a(f"s_mov_b32 s41, {2*NKO}")
    a(f"s_mov_b32 m0, {L_K}")
    kv_loop(6, [10, 11, 12, 13], 4, "L_k3", prog=False)
    a("s_barrier")
    a(f"v_mov_b32 v20, {4 - DK}")
    a(f"s_mov_b32 s42, {2*NKO - 4}")
    a.label("L_ld_k")
    kv_loop(6, [10, 11, 12, 13], "s42", "L_k2", D=DK)
    def wo_pf():
        sexpr(a, "s37", [(G, 19), (U, 15)])
        a("s_add_u32 s14, s12, s37"); a("s_addc_u32 s15, s13, 0")
        a("s_mov_b32 s54, s50"); a("s_mov_b32 s55, s51")
        a("s_and_b32 s50, s50, 0x7000"); a("s_mov_b32 s51, 0x8000")
        kv_loop(14, None, 8, "L_pfo", pf=True)
        a("s_mov_b32 s50, s54"); a("s_mov_b32 s51, s55")
    a(f"s_mov_b32 m0, {L_V}")
    if D > DK:
        kv_loop(8, [14, 15], DK, "L_v0", D=DK)
        kv_loop(8, [14, 15], D - DK, "L_v0b", prog=False)
        a(f"s_sub_u32 s41, s41, {D}")
    kv_loop(8, [14, 15], "s41", "L_v1")
    a.stamp(3)
    a("s_cmp_lg_u32 s38, 0")
    a("s_cbranch_scc1 L_ld_q")
    if spf:
        sexpr(a, "s37", [(G, 19), (U, 15)])
        a("s_add_u32 s14, s12, s37"); a("s_addc_u32 s15, s13, 0")
        a("v_lshlrev_b32 v23, 7, v1")
        for n in range(4):
            a(f"global_load_dword v{16+n}, v23, s[14:15]")
            if n < 3: a("v_add_u32 v23, 0x2000, v23")
        for d in range(D - 1, -1, -1):
            a(f"s_waitcnt vmcnt({4*d + 4})")
            post()
        a.stamp(5)
        a(f"s_waitcnt vmcnt({stw // 8})")
    else:
        wo_pf()
        for d in range(D - 1, 7, -1):
            a(f"s_waitcnt vmcnt({4*d})")
            post()
        a.stamp(5)
        a(f"s_waitcnt vmcnt({stw})")
    a(f"ds_write_b32 v6, v8 offset:{F_G}")
    a.stamp(4)
    a("s_branch L_fin")
    a.label("L_ld_q")
    for d in range(D - 1, 3, -1):
        a(f"s_waitcnt vmcnt({4*d})")
        post()
    a.stamp(4)
    a("s_waitcnt vmcnt(0)")
    a.stamp(5)
    a("s_barrier")
    a("s_branch L_fin")
    a.label("L_compute")
    a("s_sub_u32 s32, s32, 1")
    a("v_mov_b32 v8, 1")
    a("v_and_b32 v9, 3, v3")
    a("v_lshrrev_b32 v13, 2, v3")
    a("v_mov_b32 v16, -1"); a("v_mov_b32 v17, -1"); a("v_mov_b32 v18, -1"); a("v_mov_b32 v19, -1")
    a("v_lshlrev_b32 v10, 6, v1")
    a("s_waitcnt lgkmcnt(0)")
    if stamps: a(f"v_writelane_b32 v{STV}, s100, 0")
    a("s_load_dword s34, s[26:27], 0")
    a("s_getreg_b32 s35, hwreg(HW_REG_XCC_ID, 0, 4)")
    a("s_cmp_eq_u32 s32, 2")
    a("s_cbranch_scc1 L_p_pf")
    a("s_cmp_eq_u32 s38, 0")
    a("s_cbranch_scc1 L_p_done")
    a("s_cmp_ge_u32 s32, 2")
    a("s_cbranch_scc1 L_p_done")
    for u in range(4):
        a(f"global_load_dwordx4 v[{32+4*u}:{35+4*u}], v10, s[4:5] offset:{16*u}")
    sexpr(a, "s42", [(U, 1), (W, 0)])
    sexpr(a, "s39", [(G, 15), ("s42", 10)], WS_O)
    a("v_add_u32 v11, s39, v5")
    a("global_store_dwordx4 v11, v[16:19], s[26:27] sc1")
    sexpr(a, "s39", [(G, 13), ("s42", 8)], WS_SM)
    sexpr(a, "s41", [(U, 12), (G, 9), (W, 8)], WS_P5)
    a(f"s_sub_u32 s43, s41, {WS_P5 - WS_P2}")
    a("v_mov_b32 v11, s43"); a("v_mov_b32 v12, s41")
    a("v_cmp_eq_u32 vcc, 1, v2"); a("v_cndmask_b32 v11, v11, v12, vcc")
    a("v_mov_b32 v12, s39")
    a("v_cmp_eq_u32 vcc, 0, v2"); a("v_cndmask_b32 v11, v11, v12, vcc")
    a("v_lshl_add_u32 v11, v3, 4, v11")
    a("global_store_dwordx4 v11, v[16:19], s[26:27] sc1")
    a("s_branch L_p_done")
    a.label("L_p_pf")
    a("s_getpc_b64 s[14:15]")
    a("s_min_u32 s39, s29, CODE_KB")
    a("s_lshl_b32 s39, s39, 10")
    a("v_add_u32 v11, s39, v5")
    a("global_load_dwordx4 v[128:131], v11, s[14:15]")
    a.label("L_p_done")
    a("s_waitcnt lgkmcnt(0)")
    a("s_mul_i32 s33, s34, 0x9e3779b1")
    a("s_add_u32 s33, s33, 0x7f4a7c15")
    a("s_and_b32 s33, s33, 0xfffffff0")
    a("s_or_b32 s33, s33, s35")
    a("s_cmp_lg_u32 s32, 3")
    a("s_cbranch_scc1 L_noid")
    sexpr(a, "s39", [(G, 7), (T, 2)], WS_ID)
    a("v_mov_b32 v11, s39"); a("v_mov_b32 v12, s33")
    a("s_mov_b64 exec, 1")
    a("s_setprio 3")
    a("global_store_dword v11, v12, s[26:27] sc1")
    a("s_setprio 0")
    a("s_mov_b64 exec, -1")
    a.label("L_noid")
    a("s_cmp_ge_u32 s32, 2")
    a("s_cbranch_scc1 L_q_skip")
    a("s_cmp_eq_u32 s38, 0")
    a("s_cbranch_scc1 L_q_skip")
    a(f"v_mul_u32_u24 v11, {XN_STRIDE}, v9")
    a("v_lshl_add_u32 v11, v2, 4, v11")
    a(f"v_add_u32 v11, {L_XN}, v11")
    a(f"v_add_u32 v12, {L_XR}, v10")
    a("s_waitcnt vmcnt(2)")
    a.stamp(1)
    for u in range(4):
        a(f"ds_write_b128 v12, v[{32+4*u}:{35+4*u}] offset:{16*u}")
    F = 64
    for k in range(16):
        a(f"v_lshlrev_b32 v{F+2*k}, 16, v{32+k}")
        a(f"v_and_b32 v{F+2*k+1}, 0xffff0000, v{32+k}")
    a(f"v_pk_add_f32 v[20:21], v[{F}:{F+1}], v[{F+2}:{F+3}]")
    a(f"v_pk_add_f32 v[22:23], v[{F+4}:{F+5}], v[{F+6}:{F+7}]")
    for k in range(4, 16, 2):
        a(f"v_pk_add_f32 v[20:21], v[20:21], v[{F+2*k}:{F+2*k+1}]")
        a(f"v_pk_add_f32 v[22:23], v[22:23], v[{F+2*k+2}:{F+2*k+3}]")
    a("v_pk_add_f32 v[20:21], v[20:21], v[22:23]")
    a("v_add_f32 v20, v20, v21")
    row16_allreduce(a, "v_add_f32", [20])
    a("v_mul_f32 v20, 0xbb000000, v20")
    a("v_mov_b32 v21, v20")
    a("v_mov_b32 v22, 0"); a("v_mov_b32 v23, 0")
    for k in range(16):
        a(f"v_pk_add_f32 v[24:25], v[{F+2*k}:{F+2*k+1}], v[20:21]")
        a(f"v_pk_fma_f32 v[22:23], v[24:25], v[24:25], v[22:23]")
    a("v_add_f32 v22, v22, v23")
    row16_allreduce(a, "v_add_f32", [22])
    a("v_mul_f32 v22, 0x3b000000, v22")
    round_bf16(a, 20); round_bf16(a, 22)
    a("v_mov_b32 v21, v20")
    a("v_add_f32 v22, 0x3727c5ac, v22")
    round_bf16(a, 22)
    a("v_sqrt_f32 v22, v22")
    round_bf16(a, 22)
    a("v_rcp_f32 v22, v22")
    for k in range(16):
        a(f"v_pk_add_f32 v[{F+2*k}:{F+2*k+1}], v[{F+2*k}:{F+2*k+1}], v[20:21]")
    a("v_mov_b32 v23, v22")
    for k in range(16):
        a(f"v_cvt_pk_bf16_f32 v{32+k}, v{F+2*k}, v{F+2*k+1}")
    for k in range(16):
        a(f"v_lshlrev_b32 v{F+2*k}, 16, v{32+k}")
        a(f"v_and_b32 v{F+2*k+1}, 0xffff0000, v{32+k}")
    for k in range(16):
        a(f"v_pk_mul_f32 v[{F+2*k}:{F+2*k+1}], v[{F+2*k}:{F+2*k+1}], v[22:23]")
    for k in range(16):
        a(f"v_cvt_pk_bf16_f32 v{32+k}, v{F+2*k}, v{F+2*k+1}")
    a(f"v_mul_u32_u24 v12, {XN_STRIDE}, v2")
    a("v_lshl_add_u32 v12, v3, 6, v12")
    a(f"v_add_u32 v12, {L_XN}, v12")
    for u in range(4):
        a(f"ds_write_b128 v12, v[{32+4*u}:{35+4*u}] offset:{16*u}")
    for ks in range(16):
        a(f"ds_read_b128 v[{96+4*ks}:{99+4*ks}], v11 offset:{64*ks}")
    a("v_lshlrev_b32 v12, 9, v2")
    a("v_lshl_add_u32 v12, v13, 6, v12")
    a("v_lshl_add_u32 v12, v9, 3, v12")
    sexpr(a, "s39", [(W, 5)], L_WQ)
    a("v_add_u32 v12, s39, v12")
    sexpr(a, "s39", [(G, 13), (U, 7), (W, 6)], WS_QA)
    a("v_lshlrev_b32 v14, 11, v2")
    a("v_lshl_add_u32 v14, v3, 2, v14")
    a("v_add_u32 v14, s39, v14")
    a(f"v_add_u32 v15, {WS_QB - WS_QA}, v14")
    a("v_cmp_eq_u32 s[44:45], 1, v2")
    a("v_cmp_eq_u32 s[46:47], 2, v2")
    a("v_cmp_eq_u32 s[48:49], 3, v2")
    a("v_mov_b32 v25, s33")
    a.stamp(2)
    a("s_barrier")
    wait_flag(a, F_WQ, 1, "wq", sleep=0)
    a.stamp(3)
    for ks in range(16):
        r = 32 + 4 * ks
        a(f"ds_read_b64_tr_b16 v[{r}:{r+1}], v12 offset:{2048*ks}")
        a(f"ds_read_b64_tr_b16 v[{r+2}:{r+3}], v12 offset:{2048*ks + 256}")
        if ks >= 6:
            k2 = ks - 6
            a("s_waitcnt lgkmcnt(12)")
            c = "0" if k2 == 0 else "v[20:23]"
            a(f"v_mfma_f32_16x16x32_bf16 v[20:23], v[{96+4*k2}:{99+4*k2}], v[{32+4*k2}:{35+4*k2}], {c}")
    for k2 in range(10, 16):
        a(f"s_waitcnt lgkmcnt({2*(15-k2)})")
        a(f"v_mfma_f32_16x16x32_bf16 v[20:23], v[{96+4*k2}:{99+4*k2}], v[{32+4*k2}:{35+4*k2}], v[20:23]")
    a("v_cndmask_b32 v20, v20, v21, s[44:45]")
    a("v_cndmask_b32 v20, v20, v22, s[46:47]")
    a("v_cndmask_b32 v20, v20, v23, s[48:49]")
    a("v_mov_b32_dpp v21, v20 quad_perm:[1,1,3,3] row_mask:0xf bank_mask:0xf")
    a("v_cvt_pk_bf16_f32 v24, v20, v21")
    a("s_waitcnt vmcnt(0)")
    a("s_mov_b32 exec_lo, 0x55555555")
    a("s_mov_b32 exec_hi, 0x55555555")
    a("global_store_dwordx2 v14, v[24:25], s[26:27]")
    a("global_store_dwordx2 v15, v[24:25], s[26:27] sc1")
    a("s_mov_b64 exec, -1")
    signal(a, F_Q)
    a.stamp(4)
    a("s_branch L_q_done")
    a.label("L_q_skip")
    a("s_barrier")
    a.label("L_q_done")
    a("v_lshlrev_b32 v14, 8, v9")
    a("v_lshl_add_u32 v14, v2, 4, v14")
    a(f"v_add_u32 v14, {L_QL}, v14")
    a("s_lshl_b32 s39, s32, 13")
    a("v_lshl_add_u32 v12, v3, 8, s39")
    for t in range(4):
        a(f"v_add_u32 v24, {4*t}, v2")
        a("v_xor_b32 v24, v24, v3")
        a(f"v_lshl_add_u32 v{28+t}, v24, 4, v12")
    sexpr(a, "s41", [(W, 2)], L_MX)
    a("v_lshl_add_u32 v17, v9, 6, s41")
    a(f"v_lshlrev_b32 v18, 6, v9"); a(f"v_add_u32 v18, {L_MX}, v18")
    a("v_lshlrev_b32 v15, 6, v2"); a("v_lshl_add_u32 v15, v9, 4, v15")
    a(f"v_add_u32 v15, {L_PL}, v15")
    a("s_lshl_b32 s40, s32, 8")
    a("v_add_u32 v11, s40, v15")
    a("s_cmp_lt_u32 s32, 8")
    a("s_cbranch_scc1 L_qp_done")
    a("s_cmp_eq_u32 s32, 9")
    a("s_cbranch_scc1 L_service")
    if NKO > 8:
        for r in range(143, 167): a(f"v_mov_b32 v{r}, 0")
        a("v_mov_b32 v10, 0"); a("v_mov_b32 v16, 0"); a("v_mov_b32 v4, 0")
        a("s_cmp_eq_u32 s38, 0")
        a("s_cbranch_scc1 L_qk_o")
    a("s_branch L_fin")
    a.label("L_service")
    a("s_setprio 3")
    sexpr(a, "s39", [(G, 13), (B, 11)], WS_QA)
    a("v_add_u32 v20, s39, v5")
    a(f"v_add_u32 v21, {WS_QB - WS_QA}, v20")
    sexpr(a, "s39", [(G, 7)], WS_ID)
    a("v_and_b32 v22, 31, v1"); a("v_lshl_add_u32 v22, v22, 2, s39")
    a(f"v_lshlrev_b32 v23, 3, v1"); a(f"v_add_u32 v23, {L_QL}, v23")
    QR = [96, 104, 112, 120]
    NS = 4
    def qissue(k):
        ad = 21 if k == NS - 1 else 20
        a(f"global_load_dwordx4 v[{QR[k]}:{QR[k]+3}], v{ad}, s[26:27] sc1")
        a(f"global_load_dwordx4 v[{QR[k]+4}:{QR[k]+7}], v{ad}, s[26:27] offset:1024 sc1")
    if qstart is not None:
        a("s_cmp_lg_u32 s38, 0")
        a("s_cbranch_scc1 L_qs_q")
        wait_prog(a, qstart, "qs")
        a("s_branch L_qs_done")
        a.label("L_qs_q")
        wait_flag(a, F_Q, 2, "qs")
        a.label("L_qs_done")
    a("global_load_dword v36, v22, s[26:27] sc1")
    for k in range(QD - 1):
        qissue(k); a(f"s_sleep {qsl}")
    a(f"s_mov_b32 s3, {POLL_MAX}")
    a.label("L_qpoll")
    for k in range(NS):
        qissue((k + QD - 1) % NS)
        a(f"s_waitcnt vmcnt({2*(QD-1)})")
        r = QR[k]
        a(f"v_xor_b32 v32, s33, v{r+1}"); a(f"v_xor_b32 v33, s33, v{r+3}")
        a(f"v_xor_b32 v34, s33, v{r+5}"); a(f"v_xor_b32 v35, s33, v{r+7}")
        a("v_or3_b32 v32, v32, v33, v34"); a("v_or_b32 v32, v32, v35")
        a(f"v_mov_b32 v24, v{r}"); a(f"v_mov_b32 v25, v{r+2}"); a(f"v_mov_b32 v26, v{r+4}"); a(f"v_mov_b32 v27, v{r+6}")
        a("v_cmp_lt_u32 vcc, 15, v32")
        a("s_cbranch_vccz L_qok")
        a("s_sleep 2")
    a("s_sub_u32 s3, s3, 1")
    a("s_cbranch_scc0 L_qpoll")
    a.label("L_qok")
    a("ds_write_b64 v23, v[24:25]")
    a("ds_write_b64 v23, v[26:27] offset:512")
    signal(a, F_QL)
    a(f"s_mov_b32 s3, {POLL_MAX}")
    a.label("L_idchk")
    a("v_xor_b32 v36, s33, v36")
    a("v_cmp_lt_u32 vcc, 15, v36")
    a("s_cbranch_vccz L_idok")
    a("global_load_dword v36, v22, s[26:27] sc1")
    a("s_waitcnt vmcnt(0)")
    a("s_sub_u32 s3, s3, 1")
    a("s_cbranch_scc0 L_idchk")
    a.label("L_idok")
    a("v_cmp_ne_u32 vcc, 0, v36")
    a("s_or_b32 s35, vcc_lo, vcc_hi")
    a("v_mov_b32 v20, s35")
    a(f"ds_write_b32 v6, v20 offset:{F_UF}")
    signal(a, F_S3)
    a("s_cmp_lg_u32 s29, 0")
    a("s_cbranch_scc1 L_nocert")
    sexpr(a, "s39", [(G, 2)], WS_CERT)
    a("v_lshl_add_u32 v12, v1, 7, s39"); a("v_mov_b32 v21, s33")
    a("s_mov_b64 exec, 0xff")
    a("global_store_dword v12, v21, s[26:27] sc1")
    a("s_mov_b64 exec, -1")
    a.label("L_nocert")
    a.stamp(5)
    sexpr(a, "s41", [(G, 13), (T, 3)], WS_SM + SM_ML)
    a("v_lshl_add_u32 v14, v9, 8, s41")
    a(f"s_mov_b32 s42, {NKO}")
    a("s_cmp_eq_u32 s38, 0")
    a("s_cbranch_scc1 L_sv_ml")
    a(f"s_mov_b32 s42, {NKQ}")
    sexpr(a, "s41", [(G, 17), (U, 8)], WS_P3)
    a("v_lshlrev_b32 v20, 12, v2"); a("v_lshl_add_u32 v20, v3, 4, v20"); a("v_add_u32 v20, s41, v20")
    sexpr(a, "s41", [(G, 15), (U, 6)], WS_C3)
    a("v_lshrrev_b32 v21, 2, v1"); a("v_lshlrev_b32 v21, 10, v21"); a("v_lshl_add_u32 v21, v9, 4, v21"); a("v_add_u32 v21, s41, v21")
    a("v_add_u32 v22, 0x4000, v21")
    for k in range(4): a(f"v_mov_b32 v{40+k}, -1")
    for k in range(1, 7): a(f"v_add_u32 v{43+k}, {0x4000*k}, v20")
    store_local(a, ["global_store_dwordx4 v20, v[40:43], s[26:27]"] + [f"global_store_dwordx4 v{43+k}, v[40:43], s[26:27]" for k in range(1, 7)] +
                   ["global_store_dwordx4 v21, v[40:43], s[26:27]", "global_store_dwordx4 v22, v[40:43], s[26:27]"])
    if gtouch:
        a("s_mul_i32 s41, s31, 114688"); a("s_mul_i32 s43, s28, 448"); a("s_add_u32 s41, s41, s43")
        a("v_mov_b32 v23, s41")
        a("s_mov_b64 exec, 1")
        a("global_load_dword v50, v23, s[16:17]")
        a("global_load_dword v51, v23, s[18:19]")
        a("s_mov_b64 exec, -1")
    a.label("L_sv_ml")
    a("v_lshrrev_b32 v24, 2, v1")
    a("v_lshl_add_u32 v25, v24, 2, v18")
    a("v_cmp_gt_u32 s[44:45], s42, v24")
    wait_flag(a, F_L, "s42", "svl")
    a("ds_read_b32 v26, v25")
    a(f"ds_read_b32 v27, v25 offset:{L_LS - L_MX}")
    a("v_mov_b32 v28, 0xff800000")
    a(f"s_mov_b32 s39, {LOG2E}")
    a("s_waitcnt lgkmcnt(0)")
    a("v_cndmask_b32 v26, v28, v26, s[44:45]")
    a("v_cndmask_b32 v27, 0, v27, s[44:45]")
    a(dpp("v_max_f32", 28, 26, 26, "row_ror:4")); a(dpp("v_max_f32", 28, 28, 28, "row_ror:8"))
    cross_rows_allreduce(a, "v_max_f32", [28], [29])
    a("v_sub_f32 v26, v26, v28"); a("v_mul_f32 v26, s39, v26"); a("v_exp_f32 v26, v26")
    a("v_mul_f32 v29, v27, v26")
    a(dpp("v_add_f32", 29, 29, 29, "row_ror:4")); a(dpp("v_add_f32", 29, 29, 29, "row_ror:8"))
    cross_rows_allreduce(a, "v_add_f32", [29], [30])
    a("v_min_u32 v28, -2, v28"); a("v_min_u32 v29, -2, v29")
    a("s_mov_b64 exec, 15")
    store_local(a, "global_store_dwordx2 v14, v[28:29], s[26:27]")
    a("s_mov_b64 exec, -1")
    a("s_cmp_eq_u32 s38, 0")
    a("s_cbranch_scc1 L_fin")
    a("s_waitcnt vmcnt(1)")
    a("s_barrier")
    a("s_barrier")
    a("s_branch L_fin")
    a.label("L_qp_done")
    a("v_lshl_add_u32 v12, v2, 2, v13")
    a("v_and_b32 v24, 7, v12"); a("v_lshlrev_b32 v24, 1, v24")
    a("v_lshrrev_b32 v16, 1, v9")
    a("s_lshl_b32 s40, s32, 1")
    a("v_add_u32 v16, s40, v16")
    a("v_xor_b32 v24, v24, v16")
    a("v_lshlrev_b32 v16, 8, v12")
    a("v_lshl_add_u32 v16, v24, 4, v16")
    a("v_and_b32 v24, 1, v3")
    a("v_lshl_add_u32 v16, v24, 3, v16")
    a(f"v_add_u32 v16, {L_V}, v16")
    a("v_add_u32 v4, 0x8000, v16")
    a("s_lshr_b32 s43, s32, 1"); a("s_and_b32 s46, s32, 1")
    sexpr(a, "s41", [(G, 15), ("s43", 11), ("s38", 10), (U, 6), ("s46", 5)], WS_O)
    a("v_lshlrev_b32 v10, 13, v9")
    a("v_lshl_add_u32 v10, v2, 3, v10")
    a("v_add_u32 v10, s41, v10")
    a("s_cmp_lg_u32 s38, 0")
    a("s_cbranch_scc1 L_role_q")

    def fac(ks, three):
        p = 132 + (ks & ~1)
        if three: m = "op_sel:[0,1,0] op_sel_hi:[1,1,1]" if ks & 1 else "op_sel:[0,0,0] op_sel_hi:[1,0,1]"
        else: m = "op_sel:[0,1] op_sel_hi:[1,1]" if ks & 1 else "op_sel:[0,0] op_sel_hi:[1,0]"
        return f"v[{p}:{p+1}]", m

    def attention(role, NK, clears, extra=0, after_s3=None, before_b1=None):
        R = role
        if NK < 8:
            a(f"s_cmp_ge_u32 s32, {NK}")
            a(f"s_cbranch_scc1 L_noqk_{R}")
        a.label(f"L_qk_{R}")
        def getq():
            wait_flag(a, F_QL, 1, "ql" + R, sleep=lsl)
            a.stamp(6)
            for t in range(4):
                a(f"ds_read_b128 v[{64+4*t}:{67+4*t}], v14 offset:{64*t}")
        def getk():
            sexpr(a, "s42", [(W, 1)], 2)
            wait_prog(a, "s42", "k" + R, sleep=lsl)
            a.stamp(7)
            for t in range(4):
                for tau in range(2):
                    r = 32 + 16 * tau + 4 * t
                    a(f"ds_read_b128 v[{r}:{r+3}], v{28+t} offset:{4096*tau}")
        if R == "o": getk(); getq()
        else: getq(); getk()
        S = 80
        for t in range(4):
            for tau in range(2):
                if R == "q": a(f"s_waitcnt lgkmcnt({7 - 2*t - tau})")
                elif tau == 0: a(f"s_waitcnt lgkmcnt({3 - t})")
                r = 32 + 16 * tau + 4 * t
                c = "0" if t == 0 else f"v[{S+4*tau}:{S+3+4*tau}]"
                a(f"v_mfma_f32_16x16x32_bf16 v[{S+4*tau}:{S+3+4*tau}], v[{r}:{r+3}], v[{64+4*t}:{67+4*t}], {c}")
        if fine: a("v_mov_b32 v12, v80"); a("v_mov_b32 v12, v84"); a.stamp(40)
        a(f"s_mov_b32 s40, {SCALE}"); a(f"s_mov_b32 s41, {SCALE}")
        for k in range(4):
            a(f"v_cvt_pk_bf16_f32 v{20+k}, v{S+2*k}, v{S+1+2*k}")
        for k in range(4):
            a(f"v_lshlrev_b32 v{S+2*k}, 16, v{20+k}")
            a(f"v_and_b32 v{S+1+2*k}, 0xffff0000, v{20+k}")
        for k in range(4):
            a(f"v_pk_mul_f32 v[{S+2*k}:{S+1+2*k}], v[{S+2*k}:{S+1+2*k}], s[40:41]")
        for k in range(4):
            a(f"v_cvt_pk_bf16_f32 v{20+k}, v{S+2*k}, v{S+1+2*k}")
        for k in range(4):
            a(f"v_lshlrev_b32 v{S+2*k}, 16, v{20+k}")
            a(f"v_and_b32 v{S+1+2*k}, 0xffff0000, v{20+k}")
        a(f"v_max3_f32 v12, v{S}, v{S+1}, v{S+2}")
        a(f"v_max3_f32 v14, v{S+3}, v{S+4}, v{S+5}")
        a(f"v_max3_f32 v12, v12, v{S+6}, v{S+7}")
        a("v_max_f32 v12, v12, v14")
        cross_rows_allreduce(a, "v_max_f32", [12], [14])
        if fine: a.stamp(41)
        a("ds_write_b32 v17, v12")
        a(f"s_mov_b32 s40, {LOG2E}"); a(f"s_mov_b32 s41, {LOG2E}")
        a(f"v_mul_f32 v24, {LOG2E | 0x80000000}, v12")
        for k in range(4):
            a(f"v_pk_fma_f32 v[{S+2*k}:{S+1+2*k}], v[{S+2*k}:{S+1+2*k}], s[40:41], v[24:25] op_sel_hi:[1,1,0]")
        for k in range(8): a(f"v_exp_f32 v{S+k}, v{S+k}")
        for k in range(4):
            a(f"v_cvt_pk_bf16_f32 v{20+k}, v{S+2*k}, v{S+1+2*k}")
        a("ds_write_b128 v11, v[20:23]")
        signal(a, F_S3)
        if fine: a.stamp(42)
        a(f"v_pk_add_f32 v[{S}:{S+1}], v[{S}:{S+1}], v[{S+2}:{S+3}]"); a(f"v_pk_add_f32 v[{S+4}:{S+5}], v[{S+4}:{S+5}], v[{S+6}:{S+7}]")
        a(f"v_pk_add_f32 v[{S}:{S+1}], v[{S}:{S+1}], v[{S+4}:{S+5}]")
        a(f"v_add_f32 v12, v{S}, v{S+1}")
        cross_rows_allreduce(a, "v_add_f32", [12], [14])
        a(f"ds_write_b32 v17, v12 offset:{L_LS - L_MX}")
        signal(a, F_L)
        if fine: a.stamp(43)
        if NK > 8:
            a("s_cmp_eq_u32 s32, 8")
            a("s_cbranch_scc1 L_fin")
        a.label(f"L_noqk_{R}")
        a("s_mov_b32 s44, 0x000f000f"); a("s_mov_b32 s45, 0x000f000f")
        a(f"s_mov_b32 s40, {LOG2E}"); a(f"s_mov_b32 s41, {LOG2E}")
        P = 60
        def vread(ks):
            for hf in range(2):
                r = 24 + 4 * ks + 2 * hf
                ad, off = (16, 8192*ks + 4096*hf) if ks < 4 else (4, 8192*(ks-4) + 4096*hf)
                a(f"ds_read_b64_tr_b16 v[{r}:{r+1}], v{ad} offset:{off}")
        def pvm(ks):
            a(f"v_mfma_f32_16x16x32_bf16 v[{P+4*ks}:{P+3+4*ks}], v[{24+4*ks}:{27+4*ks}], v[{P+4*ks}:{P+3+4*ks}], 0")
        def pva(ks):
            if ks == 0:
                f, m = fac(0, False)
                a(f"v_pk_mul_f32 v[20:21], v[{P}:{P+1}], {f} {m}"); a(f"v_pk_mul_f32 v[22:23], v[{P+2}:{P+3}], {f} {m}")
            else:
                f, m = fac(ks, True)
                a(f"v_pk_fma_f32 v[20:21], v[{P+4*ks}:{P+1+4*ks}], {f}, v[20:21] {m}")
                a(f"v_pk_fma_f32 v[22:23], v[{P+2+4*ks}:{P+3+4*ks}], {f}, v[22:23] {m}")
        N1 = NK - 2
        wait_flag(a, F_S3, NK + 1, "s3" + R, sleep=0)
        a.stamp(8)
        a(f"ds_read_b32 v7, v6 offset:{F_K}")
        a(f"ds_read_b32 v12, v6 offset:{F_UF}")
        nm = (NK + 3) // 4
        for k in range(nm):
            a(f"ds_read_b128 v[{112+4*k}:{115+4*k}], v18 offset:{16*k}")
        for ks in range(NK):
            a(f"ds_read_b128 v[{P+4*ks}:{P+3+4*ks}], v15 offset:{256*ks}")
        a(f"s_waitcnt lgkmcnt({NK + nm})")
        a("v_readfirstlane_b32 s42, v7")
        a("v_readfirstlane_b32 s35, v12")
        a(f"s_cmp_lt_i32 s42, {4*NK - 4}")
        a(f"s_cbranch_scc1 L_vlate_{R}")
        a(f"s_waitcnt lgkmcnt({NK})")
        for ks in range(N1): vread(ks)
        a(f"s_branch L_vgo_{R}")
        a.label(f"L_vlate_{R}")
        a(f"s_waitcnt lgkmcnt({NK})")
        a.label(f"L_vgo_{R}")
        if fine: a.stamp(44)
        a("v_max3_f32 v19, v112, v113, v114")
        for k in range(3, NK, 2): a(f"v_max3_f32 v19, v19, v{112+k}, v{112+min(k+1, NK-1)}")
        a(f"v_mul_f32 v20, {LOG2E | 0x80000000}, v19")
        for k in range(0, NK, 2):
            a(f"v_pk_fma_f32 v[{112+k}:{113+k}], v[{112+k}:{113+k}], s[40:41], v[20:21] op_sel_hi:[1,1,0]")
        for k in range(NK): a(f"v_exp_f32 v{132+k}, v{112+k}")
        a(f"s_cmp_ge_i32 s42, {4*NK - 4}")
        a(f"s_cbranch_scc1 L_vin_{R}")
        wait_prog(a, 4 * NK - 4, "v1" + R, sleep=lsl)
        for ks in range(N1): vread(ks)
        a.label(f"L_vin_{R}")
        a.stamp(10)
        for ks in range(N1):
            a(f"s_waitcnt lgkmcnt({2*(N1-1-ks)})")
            pvm(ks)
        if R == "o":
            a(f"s_cmp_ge_i32 s42, {4*NK}")
            a(f"s_cbranch_scc1 L_vall_{R}")
            wait_prog(a, 4 * NK, "v2" + R, sleep=0)
            a.label(f"L_vall_{R}")
            for ks in range(N1, NK): vread(ks)
            for ks in range(N1): pva(ks)
            a.stamp(11)
        else:
            for ks in range(N1): pva(ks)
            a.stamp(11)
            a("s_barrier")
            for ks in range(N1, NK): vread(ks)
        for ks in range(N1, NK):
            a(f"s_waitcnt lgkmcnt({2*(NK-1-ks)})")
            pvm(ks)
        for ks in range(N1, NK): pva(ks)
        a("v_cvt_pk_bf16_f32 v24, v20, v21")
        a("v_cvt_pk_bf16_f32 v25, v22, v23")
        a("v_min_u32 v24, -2, v24"); a("v_min_u32 v25, -2, v25")
        a("s_mov_b64 exec, s[44:45]")
        store_local(a, "global_store_dwordx2 v10, v[24:25], s[26:27]")
        a("s_mov_b64 exec, -1")
        a.stamp(12)

    sexpr(a, "s41", [(G, 15), (W, 12)], WS_O)
    a("v_lshlrev_b32 v144, 6, v3"); a("v_lshl_add_u32 v144, v2, 4, v144"); a("v_add_u32 v144, s41, v144")
    sexpr(a, "s41", [(G, 13), ("s43", 8)], WS_SM + SM_ML)
    a("v_and_b32 v12, 7, v3"); a("v_lshlrev_b32 v145, 3, v12")
    a("v_lshl_add_u32 v145, v2, 6, v145")
    a("v_add_u32 v145, s41, v145")
    a("v_and_b32 v12, 31, v1"); a("v_lshlrev_b32 v12, 4, v12")
    sexpr(a, "s41", [(U, 12), (G, 9)], WS_P5)
    a("v_add_u32 v149, s41, v12")
    a(f"v_subrev_u32 v148, {WS_P5 - WS_P2}, v149")
    if a2 & 1:
        a("v_lshrrev_b32 v24, 1, v12"); a("v_sub_u32 v148, v148, v24")
    a("v_lshrrev_b32 v24, 5, v1")
    a("v_lshl_add_u32 v148, v24, 2, v148"); a("v_lshl_add_u32 v149, v24, 3, v149")
    a("v_lshl_add_u32 v150, v24, 11, v12"); a(f"v_add_u32 v150, {L_RED}, v150")
    sexpr(a, "s41", [(W, 9)], L_RED)
    a("v_lshl_add_u32 v156, v3, 4, s41")
    a("v_lshl_add_u32 v146, v2, 2, v156")
    a("s_mul_i32 s41, s28, 224"); a("s_lshl_b32 s42, s32, 5"); a("s_add_u32 s41, s41, s42")
    a("s_min_u32 s41, s41, 1760")
    sexpr(a, "s41", [("s41", 10), (U, 6)])
    a("s_add_u32 s20, s20, s41"); a("s_addc_u32 s21, s21, 0")
    a("v_lshrrev_b32 v152, 2, v1"); a("v_lshlrev_b32 v152, 10, v152")
    a("v_lshl_add_u32 v152, v9, 4, v152")
    a("v_add_u32 v153, 0x4000, v152"); a("v_add_u32 v157, 0x8000, v152"); a("v_add_u32 v158, 0xc000, v152")
    sexpr(a, "s41", [(G, 19), (W, 16), (U, 6)])
    a("s_add_u32 s12, s12, s41"); a("s_addc_u32 s13, s13, 0")
    a("v_lshlrev_b32 v154, 9, v2")
    a("v_lshl_add_u32 v154, v13, 6, v154")
    a("v_lshl_add_u32 v154, v9, 3, v154")
    sexpr(a, "s49", [(W, 12)], L_WO)
    a("v_add_u32 v147, s49, v154")
    sexpr(a, "s47", [(W, 11)], L_DW)
    a("v_add_u32 v154, s47, v154")
    sexpr(a, "s41", [(G, 13), (W, 6)], WS_SM + SM_HH)
    a("v_lshlrev_b32 v155, 9, v9")
    a("v_lshl_add_u32 v155, v2, 4, v155")
    a("v_add_u32 v155, s41, v155")
    a.stamp(9)
    h1loads = (["global_load_dwordx2 v[128:129], v145, s[26:27] sc1"] +
               [f"global_load_dwordx4 v[{112+4*n}:{115+4*n}], v144, s[26:27] offset:{1024*n} sc1" for n in range(4)])
    attention("o", NKO, [])
    wait_flag(a, F_G, 1, "wo", sleep=0)
    for n, r in enumerate((152, 153, 157, 158)):
        a(f"s_add_u32 m0, s49, {1024*n}")
        a(f"global_load_lds_dwordx4 v{r}, s[12:13]")
    for l in h1loads: a(l)
    a(f"s_mov_b32 s41, {LOG2E}")
    a("s_waitcnt vmcnt(5)")
    a.stamp(18)
    for kl in range(2):
        for nu in range(2):
            for hf in range(2):
                r = 96 + 8 * kl + 4 * nu + 2 * hf
                a(f"ds_read_b64_tr_b16 v[{r}:{r+1}], v147 offset:{2048*kl + 256*hf + 32*nu}")
    if sp:
        spoll(a, [([h1loads[2], h1loads[4]], list(range(116, 120)) + list(range(124, 128))),
                  ([h1loads[1], h1loads[3]], list(range(112, 116)) + list(range(120, 124))),
                  ([h1loads[0]], [128, 129])], [12, 14, 15], "h1", pre=True, prewait=0)
    else:
        poll(a, h1loads, list(range(112, 130)), 12, "h1", pre=True, prewait=0)
    a("s_waitcnt lgkmcnt(0)")
    a.stamp(14)
    for kl in range(2):
        for sh in range(2):
            for nu in range(2):
                d = 64 + 8 * sh + 4 * nu
                c = "0" if kl == 0 else f"v[{d}:{d+3}]"
                A = 112 + 4 * (2 * kl + sh); Bq = 96 + 8 * kl + 4 * nu
                a(f"v_mfma_f32_16x16x32_bf16 v[{d}:{d+3}], v[{A}:{A+3}], v[{Bq}:{Bq+3}], {c}")
                n = 4 * kl + 2 * sh + nu
                if n == 0: a(dpp("v_max_f32", 22, 128, 128, "quad_perm:[1,0,3,2]"))
                if n == 1: a(dpp("v_max_f32", 22, 22, 22, "quad_perm:[2,3,0,1]"))
                if n == 2: a(dpp("v_max_f32", 22, 22, 22, "row_half_mirror"))
                if n == 3: a("v_sub_f32 v20, v128, v22"); a("v_mul_f32 v20, s41, v20"); a("v_exp_f32 v20, v20")
                if n == 4: a("v_mul_f32 v21, v129, v20")
                if n == 5:
                    a(dpp("v_add_f32", 21, 21, 21, "quad_perm:[1,0,3,2]"))
                    for s_ in range(0, 2): a(f"v_mov_b32_dpp v{24+s_}, v20 row_newbcast:{s_} row_mask:0xf bank_mask:0xf")
                if n == 6:
                    a(dpp("v_add_f32", 21, 21, 21, "quad_perm:[2,3,0,1]"))
                    for s_ in range(2, 4): a(f"v_mov_b32_dpp v{24+s_}, v20 row_newbcast:{s_} row_mask:0xf bank_mask:0xf")
                if n == 7:
                    a(dpp("v_add_f32", 21, 21, 21, "row_half_mirror"))
                    for s_ in range(4, 8): a(f"v_mov_b32_dpp v{24+s_}, v20 row_newbcast:{s_} row_mask:0xf bank_mask:0xf")
    a("v_rcp_f32 v21, v21")
    for nu in range(2):
        d0 = 64 + 4 * nu
        a(f"v_pk_mul_f32 v[{48+2*nu}:{49+2*nu}], v[{d0}:{d0+1}], v[24:25]")
        a(f"v_pk_fma_f32 v[{48+2*nu}:{49+2*nu}], v[{d0+2}:{d0+3}], v[26:27], v[{48+2*nu}:{49+2*nu}]")
    for nu in range(2):
        d1 = 72 + 4 * nu
        a(f"v_pk_fma_f32 v[{48+2*nu}:{49+2*nu}], v[{d1}:{d1+1}], v[28:29], v[{48+2*nu}:{49+2*nu}]")
        a(f"v_pk_fma_f32 v[{48+2*nu}:{49+2*nu}], v[{d1+2}:{d1+3}], v[30:31], v[{48+2*nu}:{49+2*nu}]")
    a("v_add_f32 v48, v48, v49"); a("v_add_f32 v50, v50, v51")
    a("v_mul_f32 v48, v48, v21"); a("v_mul_f32 v50, v50, v21")
    a("ds_write_b32 v146, v48")
    a("ds_write_b32 v146, v50 offset:256")
    a("s_waitcnt lgkmcnt(0)")
    a("s_barrier")
    a("s_cmp_lg_u32 s32, 0")
    a("s_cbranch_scc1 L_p2_done")
    for k in range(4):
        a(f"ds_read_b128 v[{32+4*k}:{35+4*k}], v150 offset:{512*k}")
    a("s_waitcnt lgkmcnt(0)")
    sum4x4(a, 32)
    a("v_permlane32_swap_b32 v32, v34"); a("v_permlane32_swap_b32 v33, v35")
    a("v_pk_add_f32 v[32:33], v[32:33], v[34:35]")
    a("v_cvt_pk_bf16_f32 v32, v32, v33")
    a("v_min_u32 v32, -2, v32")
    a("global_store_dword v148, v32, s[26:27] sc1")
    a.stamp(15)
    a.label("L_p2_done")
    a("s_barrier")
    a("s_mov_b32 m0, s47")
    a("global_load_lds_dwordx4 v152, s[20:21]")
    a("s_add_u32 m0, s47, 1024")
    a("global_load_lds_dwordx4 v153, s[20:21]")
    for r in range(48, 56): a(f"v_mov_b32 v{r}, 0")
    a("s_waitcnt vmcnt(0)")
    for nu in range(2):
        for hf in range(2):
            a(f"ds_read_b64_tr_b16 v[{56+4*nu+2*hf}:{57+4*nu+2*hf}], v154 offset:{256*hf + 32*nu}")
    a.stamp(16)
    a("s_cmp_eq_u32 s32, 7")
    a("s_cbranch_scc1 L_dn_done")
    if h4d:
        a("global_load_dwordx4 v[32:35], v155, s[26:27] sc1")
        a(f"s_sleep {h4d}")
    poll(a, ["global_load_dwordx4 v[32:35], v155, s[26:27] sc1"], [32, 33, 34, 35], 12, "h4", sleep=h4s)
    a.stamp(20)
    a("s_waitcnt lgkmcnt(0)")
    a("v_mfma_f32_16x16x32_bf16 v[48:51], v[32:35], v[56:59], 0")
    a("v_mfma_f32_16x16x32_bf16 v[52:55], v[32:35], v[60:63], 0")
    a.label("L_dn_done")
    a("s_mov_b64 exec, 0xffff")
    a("ds_write_b128 v156, v[48:51]")
    a("ds_write_b128 v156, v[52:55] offset:256")
    a("s_mov_b64 exec, -1")
    a("s_waitcnt lgkmcnt(0)")
    a("s_barrier")
    a("s_cmp_lg_u32 s32, 0")
    a("s_cbranch_scc1 L_fin")
    for k in range(4):
        a(f"ds_read_b128 v[{32+4*k}:{35+4*k}], v150 offset:{512*k}")
    a("s_waitcnt lgkmcnt(0)")
    sum4x4(a, 32)
    a("v_permlane32_swap_b32 v32, v34"); a("v_permlane32_swap_b32 v33, v35")
    a("v_pk_add_f32 v[32:33], v[32:33], v[34:35]")
    a("v_min_u32 v32, -2, v32"); a("v_min_u32 v33, -2, v33")
    a("global_store_dwordx2 v149, v[32:33], s[26:27] sc1")
    a.stamp(21)
    a("s_branch L_fin")
    a.label("L_role_q")
    a("s_min_u32 s46, s32, 6")
    sexpr(a, "s41", [(G, 17), ("s46", 14), (U, 8)], WS_P3)
    a("v_lshlrev_b32 v144, 12, v2"); a("v_lshl_add_u32 v144, v3, 4, v144"); a("v_add_u32 v144, s41, v144")
    sexpr(a, "s41", [(G, 15), ("s46", 12), (U, 6)], WS_C3)
    a("v_lshlrev_b32 v145, 10, v2"); a("v_lshl_add_u32 v145, v3, 2, v145"); a("v_add_u32 v145, s41, v145")
    sexpr(a, "s41", [(G, 13), (U, 7)], WS_SM + SM_ST)
    a("v_lshlrev_b32 v146, 6, v2"); a("v_lshl_add_u32 v146, v3, 4, v146"); a("v_add_u32 v146, s41, v146")
    a("s_mul_i32 s41, s31, 114688")
    a("s_mul_i32 s42, s28, 448"); a("s_add_u32 s41, s41, s42")
    if gul:
        a("s_add_u32 s16, s16, s41"); a("s_addc_u32 s17, s17, 0")
        a("s_add_u32 s18, s18, s41"); a("s_addc_u32 s19, s19, 0")
        a("s_lshl_b32 s42, s46, 7")
        for n in range(2):
            a(f"v_add_u32 v12, s42, v1")
            if n: a("v_add_u32 v12, 64, v12")
            a("v_mul_u32_u24 v24, 2341, v12"); a("v_lshrrev_b32 v24, 16, v24")
            a(f"v_mul_u32_u24 v24, {3584 - 448}, v24")
            a(f"v_lshl_add_u32 v{147+n}, v12, 4, v24")
        sexpr(a, "s47", [("s46", 11)], L_GW)
        a("v_lshl_add_u32 v12, v2, 3, v13"); a("v_mul_u32_u24 v149, 448, v12")
        a("v_and_b32 v12, 1, v3"); a("v_lshl_add_u32 v149, v12, 3, v149")
        a("v_and_b32 v12, 2, v3"); a("v_mul_u32_u24 v12, 7168, v12"); a("v_add_u32 v149, v149, v12")
        sexpr(a, "s42", [("s46", 6)], L_GW)
        a("v_add_u32 v149, s42, v149")
    else:
        a("s_lshl_b32 s42, s46, 6"); a("s_add_u32 s41, s41, s42")
        a("s_add_u32 s16, s16, s41"); a("s_addc_u32 s17, s17, 0")
        a("s_add_u32 s18, s18, s41"); a("s_addc_u32 s19, s19, 0")
        a("v_lshrrev_b32 v147, 2, v1"); a("v_mul_u32_u24 v147, 3584, v147")
        a("v_lshl_add_u32 v147, v9, 4, v147")
        a(f"v_add_u32 v148, {16*3584}, v147")
        sexpr(a, "s47", [(W, 12)], L_GW)
        a("v_lshlrev_b32 v149, 9, v2")
        a("v_lshl_add_u32 v149, v13, 6, v149")
        a("v_and_b32 v12, 1, v3"); a("v_lshl_add_u32 v149, v12, 3, v149")
        a("v_and_b32 v12, 2, v3"); a("v_lshl_add_u32 v149, v12, 10, v149")
        a("v_add_u32 v149, s47, v149")
    a(f"v_lshlrev_b32 v12, 6, v9"); a("v_lshl_add_u32 v12, v2, 4, v12"); a(f"v_add_u32 v12, {L_HA}, v12")
    a(f"v_mov_b32 v24, {L_HA + 320}")
    for tau in range(4):
        a(f"v_cmp_eq_u32 vcc, {tau}, v13")
        a(f"v_cndmask_b32 v{150+tau}, v24, v12, vcc")
    a(f"v_mov_b32 v12, {L_HA + 256}")
    a("v_cmp_eq_u32 vcc, 4, v3")
    a("v_cndmask_b32 v154, v150, v12, vcc")
    a("v_mov_b32 v24, 0x3f803f80")
    a("v_and_b32 v12, 31, v1")
    a("v_cmp_gt_u32 vcc, 16, v12")
    a("v_cndmask_b32 v24, 0, v24, vcc")
    a("v_lshlrev_b32 v12, 2, v12"); a(f"v_add_u32 v12, {L_HA + 256}, v12")
    a("ds_write_b32 v12, v24")
    sexpr(a, "s41", [(U, 12)], WS_P5)
    a("v_add_u32 v155, s41, v5")
    a(f"v_subrev_u32 v156, {WS_P5 - WS_P2}, v155")
    if a2 & 1:
        a("v_and_b32 v12, 31, v1"); a("v_lshlrev_b32 v12, 3, v12"); a("v_sub_u32 v156, v156, v12")
    if a5:
        a("v_lshrrev_b32 v12, 3, v1"); a("v_lshlrev_b32 v155, 9, v12")
        a("v_and_b32 v12, 7, v1"); a("v_lshl_add_u32 v155, v12, 3, v155")
        a("s_lshl_b32 s42, s28, 6"); a("s_add_u32 s42, s42, s41"); a("v_add_u32 v155, s42, v155")
        a("v_lshrrev_b32 v24, 1, v12"); a("v_and_b32 v25, 1, v12")
        a("s_lshl_b32 s42, s28, 3"); a("v_lshl_add_u32 v24, v24, 1, s42")
        a("v_lshl_add_u32 v160, v25, 7, v24"); a(f"v_add_u32 v160, {L_HA}, v160")
        a("v_lshl_add_u32 v143, v25, 11, v24"); a("s_lshl_b32 s42, s31, 6"); a("v_add_u32 v143, s42, v143")
    a("v_and_b32 v12, 31, v1"); a("v_lshlrev_b32 v12, 1, v12")
    a("v_lshrrev_b32 v24, 5, v1")
    a("v_lshl_add_u32 v157, v24, 11, v12")
    a("s_lshl_b32 s41, s31, 6"); a("v_add_u32 v157, s41, v157")
    a("v_lshl_add_u32 v158, v24, 7, v12"); a(f"v_add_u32 v158, {L_HA}, v158")
    a(f"v_add_u32 v159, {L_XR}, v157")
    sexpr(a, "s41", [(G, 7)], WS_CERT)
    a("v_and_b32 v12, 7, v1"); a("v_lshl_add_u32 v161, v12, 2, s41")
    a("s_and_b32 s42, s32, 1")
    sexpr(a, "s48", [(U, 1), ("s42", 0)])
    a("s_min_u32 s48, s48, 27")
    sexpr(a, "s41", [(G, 17), ("s48", 12)], WS_P3)
    a("v_add_u32 v162, s41, v5")
    sexpr(a, "s41", [(G, 15), ("s48", 10)], WS_C3)
    a("v_lshl_add_u32 v163, v1, 2, s41")
    sexpr(a, "s41", [(G, 13)], WS_SM + SM_ST)
    a("v_lshl_add_u32 v165, v3, 7, s41")
    a("v_mul_u32_u24 v24, 20, v2"); a("v_add_u32 v164, v165, v24")
    a("v_lshl_add_u32 v165, v2, 4, v165")
    sexpr(a, "s41", [(G, 13), ("s48", 4)], WS_SM + SM_HH)
    a("v_lshlrev_b32 v166, 9, v2"); a("v_lshl_add_u32 v166, v3, 1, v166"); a("v_add_u32 v166, s41, v166")
    a.stamp(9)
    attention("q", NKQ, [])
    h3loads = ([f"global_load_dword v{48+n}, v163, s[26:27] offset:{256*n} sc1" for n in range(4)] +
               ["global_load_dword v52, v164, s[26:27] sc1", "global_load_dword v53, v165, s[26:27] offset:64 sc1"] +
               [f"global_load_dwordx4 v[{32+4*u}:{35+4*u}], v162, s[26:27] offset:{1024*u} sc1" for u in range(4)])
    if gdelay:
        a("s_cmp_lg_u32 s32, 0")
        a("s_cbranch_scc1 L_gd_done")
        sexpr(a, "s41", [(G, 15)], WS_O + 0x7800 + 60)
        a("v_and_b32 v24, 31, v1"); a("v_lshl_add_u32 v24, v24, 6, s41")
        poll(a, ["global_load_dword v20, v24, s[26:27] sc1"], [20], 12, "gd", sleep=2)
        a.label("L_gd_done")
    a("s_barrier")
    a("s_cmp_eq_u32 s32, 7")
    a("s_cbranch_scc1 L_h2")
    GN = NT if gul else ""
    a("s_mov_b32 m0, s47")
    a(f"global_load_lds_dwordx4 v147, s[16:17]{GN}")
    a("s_add_u32 m0, s47, 1024")
    a(f"global_load_lds_dwordx4 v148, s[16:17]{GN}")
    a(f"s_add_u32 m0, s47, {14336 if gul else 2048}")
    a(f"global_load_lds_dwordx4 v147, s[18:19]{GN}")
    a(f"s_add_u32 m0, s47, {15360 if gul else 3072}")
    a(f"global_load_lds_dwordx4 v148, s[18:19]{GN}")
    def dpfl():
        a("global_load_dwordx4 v[56:59], v5, s[20:21]")
        a("global_load_dwordx4 v[60:63], v5, s[20:21] offset:1024")
    if dpf and not dlate: dpfl()
    a("v_mov_b32 v24, 0x3f803f80")
    for tau in range(4):
        a(f"v_cmp_eq_u32 vcc, {4*tau}, v3")
        a(f"v_cndmask_b32 v{32+4*tau}, 0, v24, vcc")
        for k in range(1, 4): a(f"v_mov_b32 v{32+4*tau+k}, v{32+4*tau}")
    if not dpf:
        a("s_waitcnt vmcnt(0)")
    elif sparse:
        a("s_cmp_lg_u32 s32, 6")
        a("s_cbranch_scc1 L_sp1")
        a("s_mul_i32 s41, s28, 224"); a("s_mul_i32 s42, s31, 14"); a("s_add_u32 s41, s41, s42"); a("s_min_u32 s41, s41, 1776")
        a("s_lshl_b32 s41, s41, 10")
        a("v_lshl_add_u32 v56, v1, 7, s41"); a("v_add_u32 v57, 0x2000, v56")
        a("global_load_dword v58, v56, s[20:21]"); a("global_load_dword v59, v57, s[20:21]")
        a("s_waitcnt vmcnt(2)")
        a("s_branch L_sp2")
        a.label("L_sp1")
        a("s_waitcnt vmcnt(0)")
        a.label("L_sp2")
    else:
        if dpf and dlate: dpfl()
        a(f"s_waitcnt vmcnt({2 if dpf else 0})")
    if gul:
        signal(a, F_G)
        wait_flag(a, F_G, 7, "gu", sleep=0)
    a.stamp(13)
    for tau in range(4):
        for hf in range(2):
            r = 96 + 4 * tau + 2 * hf
            a(f"ds_read_b64_tr_b16 v[{r}:{r+1}], v149 offset:{(4*448 if gul else 256)*hf + 16*tau}")
    for tau in range(4):
        a(f"s_waitcnt lgkmcnt({6 - 2*tau})")
        c = "0" if tau == 0 else "v[20:23]"
        a(f"v_mfma_f32_16x16x32_bf16 v[20:23], v[{32+4*tau}:{35+4*tau}], v[{96+4*tau}:{99+4*tau}], {c}")
    a("v_min_u32 v20, -2, v20")
    store_local(a, "global_store_dword v145, v20, s[26:27]")
    a(f"s_mov_b32 s41, {LOG2E | 0x80000000}")
    a("s_mov_b32 s44, 0x00550055"); a("s_mov_b32 s45, 0x00550055")
    if sparse and wearly:
        pass
    elif sparse:
        a("s_cmp_lg_u32 s32, 2")
        a("s_cbranch_scc1 L_h2_done")
        a("s_min_u32 s43, s31, 13")
        sexpr(a, "s42", [(G, 17), ("s43", 13)], WS_P3)
        a("v_lshl_add_u32 v23, v1, 7, s42")
        a("global_load_dword v50, v23, s[26:27] sc1")
        sexpr(a, "s42", [(G, 15), ("s43", 11)], WS_C3)
        sexpr(a, "s43", [(G, 13)], WS_SM + SM_ST)
        a("v_mov_b32 v23, s42"); a("v_mov_b32 v24, s43")
        a("v_and_b32 v25, 16, v1"); a("v_cmp_eq_u32 vcc, 0, v25"); a("v_cndmask_b32 v23, v24, v23, vcc")
        a("v_lshl_add_u32 v23, v3, 7, v23")
        a("global_load_dword v51, v23, s[26:27] sc1")
    else:
        a("s_cmp_ge_u32 s32, 2")
        a("s_cbranch_scc1 L_h2_done")
        for l in h3loads: a(l)
    a.stamp(14)
    a("s_branch L_h2_done")
    a.label("L_h2")
    if sparse and wearly:
        a("s_min_u32 s43, s31, 13")
        sexpr(a, "s42", [(G, 17), ("s43", 13)], WS_P3)
        a("v_lshl_add_u32 v23, v1, 7, s42")
        a("global_load_dword v50, v23, s[26:27] sc1")
        sexpr(a, "s42", [(G, 15), ("s43", 11)], WS_C3)
        sexpr(a, "s43", [(G, 13)], WS_SM + SM_ST)
        a("v_mov_b32 v23, s42"); a("v_mov_b32 v24, s43")
        a("v_and_b32 v25, 16, v1"); a("v_cmp_eq_u32 vcc, 0, v25"); a("v_cndmask_b32 v23, v24, v23, vcc")
        a("v_lshl_add_u32 v23, v3, 7, v23")
        a("global_load_dword v51, v23, s[26:27] sc1")
    a("ds_read_u16 v24, v159")
    a("ds_read_u16 v25, v159 offset:1024")
    a(f"s_mov_b32 s3, {POLL_MAX}")
    a.label("L_certpoll")
    a("global_load_dword v20, v161, s[26:27] sc1")
    a("s_waitcnt vmcnt(0)")
    a("v_xor_b32 v20, s33, v20")
    a("v_cmp_lt_u32 vcc, 15, v20")
    a("s_cbranch_vccz L_cert_ok")
    a("s_sleep 4")
    a("s_sub_u32 s3, s3, 1")
    a("s_cbranch_scc0 L_certpoll")
    a.label("L_cert_ok")
    a("s_waitcnt lgkmcnt(0)")
    a("v_lshlrev_b32 v24, 16, v24"); a("v_lshlrev_b32 v25, 16, v25")
    a("v_mov_b32 v58, 0"); a("v_mov_b32 v59, 0")
    if h2d: a(f"s_sleep {h2d}")
    if a2 == 0:
        spoll(a, [([f"global_load_dwordx4 v[{32+4*u}:{35+4*u}], v156, s[26:27] offset:{1024*u} sc1"], list(range(32+4*u, 36+4*u))) for u in range(4)],
              [12, 14, 15, 16], "h2")
    elif a2 == 2:
        spoll(a, [([f"global_atomic_add_x2 v[{32+4*u}:{33+4*u}], v156, v[58:59], s[26:27] offset:{1024*u} sc0",
                    f"global_atomic_add_x2 v[{34+4*u}:{35+4*u}], v156, v[58:59], s[26:27] offset:{1024*u+8} sc0"], list(range(32+4*u, 36+4*u))) for u in range(4)],
              [12, 14, 15, 16], "h2")
    else:
        if a2 == 1: ld = lambda u: f"global_load_dwordx2 v[{48+2*u}:{49+2*u}], v156, s[26:27] offset:{1024*u} sc1"
        else: ld = lambda u: f"global_atomic_add_x2 v[{48+2*u}:{49+2*u}], v156, v[58:59], s[26:27] offset:{1024*u} sc0"
        if p2:
            at = lambda r, u: f"global_atomic_add_x2 v[{r+2*u}:{r+1+2*u}], v156, v[58:59], s[26:27] offset:{1024*u} sc0"
            for k in range(8): a(f"v_mov_b32 v{48+k}, -1")
            for u in range(4): a(f"s_mov_b64 s[{56+2*u}:{57+2*u}], -1")
            def issue(r):
                for u in range(4):
                    a(f"s_or_b64 exec, s[{56+2*u}:{57+2*u}], 1")
                    a(at(r, u))
                a("s_mov_b64 exec, -1")
            def merge(r):
                for u in range(4):
                    a(f"v_cndmask_b32 v{48+2*u}, v{48+2*u}, v{r+2*u}, s[{56+2*u}:{57+2*u}]")
                    a(f"v_cndmask_b32 v{49+2*u}, v{49+2*u}, v{r+1+2*u}, s[{56+2*u}:{57+2*u}]")
                for u in range(4):
                    a(f"v_max_u32 v{[12,14,15,16][u]}, v{48+2*u}, v{49+2*u}")
                for u in range(4):
                    a(f"v_cmp_eq_u32 s[{56+2*u}:{57+2*u}], -1, v{[12,14,15,16][u]}")
                a("s_or_b64 vcc, s[56:57], s[58:59]"); a("s_or_b64 s[64:65], s[60:61], s[62:63]")
                a("s_or_b64 vcc, vcc, s[64:65]")
                a("s_cbranch_scc0 L_p2d")
            issue(64)
            a(f"s_sleep {p2}")
            a(f"s_mov_b32 s3, {POLL_MAX}")
            a.label("L_p2l")
            issue(72); a("s_waitcnt vmcnt(4)"); merge(64)
            issue(64); a("s_waitcnt vmcnt(4)"); merge(72)
            a("s_sub_u32 s3, s3, 1")
            a("s_cbranch_scc0 L_p2l")
            a.label("L_p2d")
        else:
            spoll(a, [([ld(u)], [48+2*u, 49+2*u]) for u in range(4)], [12, 14, 15, 16], "h2")
        for k in range(8):
            a(f"v_lshlrev_b32 v{32+2*k}, 16, v{48+k}"); a(f"v_and_b32 v{33+2*k}, 0xffff0000, v{48+k}")
    a.stamp(15)
    sum4x4(a, 32)
    a("v_permlane32_swap_b32 v32, v34")
    a("v_permlane32_swap_b32 v33, v35")
    a("v_add_f32 v32, v32, v34"); a("v_add_f32 v33, v33, v35")
    a("v_cvt_pk_bf16_f32 v34, v32, v33")
    a("v_lshlrev_b32 v32, 16, v34"); a("v_and_b32 v33, 0xffff0000, v34")
    a("v_add_f32 v32, v32, v24"); a("v_add_f32 v33, v33, v25")
    a("v_cvt_pk_bf16_f32 v34, v32, v33")
    a("ds_write_b16 v158, v34")
    a("ds_write_b16_d16_hi v158, v34 offset:64")
    a("v_lshlrev_b32 v24, 16, v34"); a("v_and_b32 v25, 0xffff0000, v34")
    a.label("L_h2_done")
    a("s_waitcnt lgkmcnt(0)")
    a("s_barrier")
    a.stamp(16)
    a("s_cmp_eq_u32 s32, 7")
    a("s_cbranch_scc1 L_stats")
    for tau in range(4):
        a(f"ds_read_b128 v[{112+4*tau}:{115+4*tau}], v{150+tau}")
    for tau in range(4):
        a(f"s_waitcnt lgkmcnt({3 - tau})")
        c = "0" if tau == 0 else "v[20:23]"
        a(f"v_mfma_f32_16x16x32_bf16 v[20:23], v[{112+4*tau}:{115+4*tau}], v[{96+4*tau}:{99+4*tau}], {c}")
    for k in range(4):
        a(f"v_min_u32 v{20+k}, -2, v{20+k}")
    store_local(a, "global_store_dwordx4 v144, v[20:23], s[26:27]")
    a.stamp(17)
    a("s_cmp_ge_u32 s32, 2")
    a("s_cbranch_scc1 L_fin")
    a("s_cmp_ge_u32 s31, 14")
    a("s_cbranch_scc1 L_fin")
    if sp:
        spoll(a, [(h3loads[6+n:7+n], list(range(32+4*n, 36+4*n))) for n in range(4)] + [(h3loads[4:6], [52, 53]), (h3loads[0:4], [48, 49, 50, 51])],
              [12, 14, 15, 16, 17, 18], "h3")
    else:
        poll(a, h3loads, list(range(32, 54)), 12, "h3")
    a.stamp(19)
    a("v_add_f32 v48, v48, v49"); a("v_add_f32 v50, v50, v51")
    row16_allreduce(a, "v_add_f32", [52, 53])
    a("v_add_f32 v48, v48, v50")
    sum4x4(a, 32)
    cross_rows_allreduce(a, "v_add_f32", [48], [49])
    a("v_mul_f32 v25, 0x3b000000, v53")
    a("v_mul_f32 v24, 0x3b000000, v52")
    rows_reduce_scatter(a, 32)
    a("v_fma_f32 v24, -v25, v25, v24")
    a("v_max_f32 v24, 0, v24")
    round_bf16(a, 25); round_bf16(a, 24)
    a("v_add_f32 v24, 0x3727c5ac, v24")
    round_bf16(a, 24)
    a("v_sqrt_f32 v24, v24")
    a("v_fma_f32 v32, -v25, v48, v32")
    round_bf16(a, 24)
    a("v_rcp_f32 v24, v24")
    a("v_mul_f32 v32, v32, v24")
    round_bf16(a, 32)
    a("v_mul_f32 v34, s41, v32")
    a("v_exp_f32 v34, v34")
    a("v_mov_b32_dpp v33, v32 row_ror:8 row_mask:0xf bank_mask:0xf")
    a("v_add_f32 v34, 1.0, v34")
    a("v_rcp_f32 v34, v34")
    round_bf16(a, 34)
    a("v_mul_f32 v34, v34, v33")
    a("v_mov_b32_dpp v35, v34 quad_perm:[1,1,3,3] row_mask:0xf bank_mask:0xf")
    a("v_cvt_pk_bf16_f32 v34, v34, v35")
    a("v_min_u32 v34, -2, v34")
    a("s_mov_b64 exec, s[44:45]")
    store_local(a, "global_store_dword v166, v34, s[26:27]")
    a("s_mov_b64 exec, -1")
    a.stamp(20)
    a("s_branch L_fin")
    a.label("L_stats")
    a("ds_read_b128 v[112:115], v154")
    a("s_waitcnt lgkmcnt(0)")
    a("v_mfma_f32_16x16x32_bf16 v[20:23], v[112:115], v[112:115], 0")
    for k in range(4):
        a(f"v_min_u32 v{20+k}, -2, v{20+k}")
    a("s_mov_b64 exec, 0x000f000f")
    store_local(a, "global_store_dwordx4 v146, v[20:23], s[26:27]")
    a("s_mov_b64 exec, -1")
    a.stamp(17)
    if a5:
        a("ds_read_u16 v24, v160"); a("ds_read_u16 v25, v160 offset:64")
        a("s_waitcnt lgkmcnt(0)")
        a("v_lshlrev_b32 v24, 16, v24"); a("v_lshlrev_b32 v25, 16, v25")
        if a5b: a("s_barrier")
        else: a("s_sleep 12")
        if p5:
            a("global_atomic_add_x2 v[32:33], v155, v[58:59], s[26:27] sc0")
            a(f"s_sleep {p5}")
            a(f"s_mov_b32 s3, {POLL_MAX}")
            a.label("L_p5")
            a("global_atomic_add_x2 v[36:37], v155, v[58:59], s[26:27] sc0")
            a("s_waitcnt vmcnt(1)")
            a("v_max_u32 v12, v32, v33")
            a("v_cmp_eq_u32 vcc, -1, v12")
            a("s_cbranch_vccz L_p5a")
            a("global_atomic_add_x2 v[32:33], v155, v[58:59], s[26:27] sc0")
            a("s_waitcnt vmcnt(1)")
            a("v_max_u32 v12, v36, v37")
            a("v_cmp_eq_u32 vcc, -1, v12")
            a("s_cbranch_vccz L_p5b")
            a("s_sub_u32 s3, s3, 1")
            a("s_cbranch_scc0 L_p5")
            a.label("L_p5b")
            a("v_mov_b32 v40, v36"); a("v_mov_b32 v41, v37")
            a("s_branch L_p5c")
            a.label("L_p5a")
            a("v_mov_b32 v40, v32"); a("v_mov_b32 v41, v33")
            a.label("L_p5c")
        else:
            poll(a, ["global_atomic_add_x2 v[40:41], v155, v[58:59], s[26:27] sc0"], [40, 41], 12, "h5")
        a.stamp(21)
        for k in range(2): a(dpp("v_add_f32", 40+k, 40+k, 40+k, "row_ror:8"))
        cross_rows_allreduce(a, "v_add_f32", [40, 41], [42, 43])
        a("v_cvt_pk_bf16_f32 v42, v40, v41")
        a("v_lshlrev_b32 v40, 16, v42"); a("v_and_b32 v41, 0xffff0000, v42")
        a("v_add_f32 v40, v40, v24"); a("v_add_f32 v41, v41, v25")
        a("v_cvt_pk_bf16_f32 v42, v40, v41")
        a("s_mov_b64 exec, 0xff")
        a("global_store_short v143, v42, s[22:23]")
        a("global_store_short_d16_hi v143, v42, s[22:23] offset:1024")
        a("s_mov_b64 exec, -1")
        a("s_or_b32 s43, s31, s28")
        a("s_cmp_lg_u32 s43, 0")
        a("s_cbranch_scc1 L_fin")
    else:
        a("s_and_b32 s43, s31, 7")
        a("s_cmp_lg_u32 s43, s28")
        a("s_cbranch_scc1 L_fin")
        spoll(a, [([f"global_load_dwordx4 v[{32+4*u}:{35+4*u}], v155, s[26:27] offset:{1024*u} sc1"], list(range(32+4*u, 36+4*u))) for u in range(4)],
              [12, 14, 15, 16], "h5")
        a.stamp(21)
        sum4x4(a, 32)
        a("v_permlane32_swap_b32 v32, v34")
        a("v_permlane32_swap_b32 v33, v35")
        a("v_add_f32 v32, v32, v34"); a("v_add_f32 v33, v33, v35")
        a("v_cvt_pk_bf16_f32 v34, v32, v33")
        a("v_lshlrev_b32 v32, 16, v34"); a("v_and_b32 v33, 0xffff0000, v34")
        a("v_add_f32 v32, v32, v24"); a("v_add_f32 v33, v33, v25")
        a("v_cvt_pk_bf16_f32 v34, v32, v33")
        a("global_store_short v157, v34, s[22:23]")
        a("global_store_short_d16_hi v157, v34, s[22:23] offset:1024")
        a("s_cmp_lg_u32 s31, 0")
        a("s_cbranch_scc1 L_fin")
    a("s_add_u32 s43, s34, 1")
    a("v_mov_b32 v14, 0"); a("v_mov_b32 v15, s43")
    a("s_mov_b64 exec, 1")
    a("global_store_dword v14, v15, s[26:27]")
    a("s_mov_b64 exec, -1")
    a.label("L_fin")
    if stamps:
        a.stamp(30)
        a("s_lshl_b32 s41, s2, 12")
        a(f"s_add_u32 s41, s41, {WS_ST}")
        a("v_lshl_add_u32 v14, v0, 2, s41")
        a(f"global_store_dword v14, v{STV}, s[26:27]")
    a.label("L_end")
    a("s_endpgm")
    for l1, ins, l2 in a.cold:
        a.label(l1)
        for i in ins: a(i)
        a("s_nop 1")
        a(f"s_branch {l2}")
    a.lines = hz.fix(a.lines)
    return a

def emit(fname, **kw):
    a = build(**kw)
    txt = kernel_file([(NAME + "_kernel", a, 168, 102, 168)], [(NAME + "_kernel", (256, 1, 1), (704, 1, 1), LDS_BYTES)])
    txt = txt.replace("CODE_KB", "13")
    k = txt.rindex("    s_endpgm\n")
    txt = txt[:k] + "    s_endpgm\n    .fill 1024, 4, 0xbf810000\n" + txt[k + len("    s_endpgm\n"):]
    open(fname, "w").write(txt)

if __name__ == "__main__":
    emit("v17.s")
    emit("v17st.s", stamps=True)
    emit("c0.s", stamps="mini")
    emit("c_88b.s", stamps="mini", NKO=8, NKQ=8, k_before=16)
```
